```python
import torch

def _softmax(x, axis=-1):
    return torch.softmax(x, dim=axis)
def _gelu(x):
    return torch.nn.functional.gelu(x, approximate="tanh")
def _silu(x):
    return torch.nn.functional.silu(x)
def _sigmoid(x):
    return torch.sigmoid(x)
def _layernorm(x, axis=-1, eps=1e-5):
    m = x.mean(dim=axis, keepdim=True)
    v = x.var(dim=axis, keepdim=True, unbiased=False)
    return (x - m) / torch.sqrt(v + eps)
def _scatter_add(tgt, idx, src, axis=0):
    return tgt.clone().index_add_(axis, idx, src)
def _segment_sum(src, seg, n):
    out = torch.zeros((n,) + src.shape[1:], dtype=src.dtype)
    return out.index_add_(0, seg, src)
def _pad(x, pw):
    flat = tuple(v for pair in reversed(pw) for v in pair)
    return torch.nn.functional.pad(x, flat)

kernel_name = 'recurrent_scan__sliding_block_cached__mixer_channel_mlp__decode'

def setup_inputs():

    _w = (lambda a: (lambda t: t.to(torch.bfloat16) if t.is_floating_point() else t)(torch.as_tensor(a)))
    def _A_setup():
        B, Sq, D = 1, 1, 512
        Hq, Hkv, Sk, Dh = 32, 8, 32768, 128
        assert Hq % Hkv == 0, (Hq, Hkv)
        return {
            "x": _w((lambda *s: torch.randn(*s, dtype=torch.bfloat16) * 0.1)(B, Sq, D)),
            "k_cache": _w((lambda *s: torch.randn(*s, dtype=torch.bfloat16) * 0.8)(B, Hkv, Sk, Dh)),
            "v_cache": _w((lambda *s: torch.randn(*s, dtype=torch.bfloat16) * 3.2)(B, Hkv, Sk, Dh)),
            "wq": _w((lambda *s: torch.randn(*s, dtype=torch.bfloat16) * 0.8)(D, Hq * Dh) * (D ** -0.5)),
            "wo": _w((lambda *s: torch.randn(*s, dtype=torch.bfloat16) * 3.2)(Hq * Dh, D) * ((Hq * Dh) ** -0.5)),
        }
    _A_in = _A_setup()

    def _B_setup():
        B, S, D, F = 1, 1, 512, 1792
        return {
            "x": _w((lambda *s: torch.randn(*s, dtype=torch.bfloat16) * 0.1)(B, S, D)),
            "w1": _w((lambda *s: torch.randn(*s, dtype=torch.bfloat16) * 3.2)(D, F) * (D ** -0.5)),
            "b1": _w((lambda *s: torch.randn(*s, dtype=torch.bfloat16) * 3.2)(F)),
            "w2": _w((lambda *s: torch.randn(*s, dtype=torch.bfloat16) * 3.2)(F, D) * (F ** -0.5)),
            "b2": _w((lambda *s: torch.randn(*s, dtype=torch.bfloat16) * 3.2)(D)),
        }
    _B_in = _B_setup()

    return {
        "A_x": _A_in["x"],
        "A_k_cache": _A_in["k_cache"],
        "A_v_cache": _A_in["v_cache"],
        "A_wq": _A_in["wq"],
        "A_wo": _A_in["wo"],
        "B_x": _B_in["x"],
        "B_w1": _B_in["w1"],
        "B_b1": _B_in["b1"],
        "B_w2": _B_in["w2"],
        "B_b2": _B_in["b2"],
    }

def reference(A_x, A_k_cache, A_v_cache, A_wq, A_wo, B_x, B_w1, B_b1, B_w2, B_b2):
    def _A_ref(x, k_cache, v_cache, wq, wo):
        B, Sq, D = x.shape
        Hq, Dh = 32, 128
        Hkv, Sk = k_cache.shape[1], k_cache.shape[2]
        W = min(4096, max(256, Sk // 4))
        rep = Hq // Hkv
        q = (lambda x, *d: x.permute(*d))((x @ wq).reshape(B, Sq, Hq, Dh), 0, 2, 1, 3)
        k = (lambda x, n, axis: torch.repeat_interleave(x, n, dim=axis))(k_cache[:, :, Sk - W:, :], rep, axis=1)
        v = (lambda x, n, axis: torch.repeat_interleave(x, n, dim=axis))(v_cache[:, :, Sk - W:, :], rep, axis=1)
        scores = torch.einsum("bhqd,bhkd->bhqk", q, k) * (Dh ** -0.5)
        p = _softmax(scores, axis=-1)
        o = torch.einsum("bhqk,bhkd->bhqd", p, v)
        return (lambda x, *d: x.permute(*d))(o, 0, 2, 1, 3).reshape(B, Sq, Hq * Dh) @ wo

    def _B_ref(x, w1, b1, w2, b2):
        y = _layernorm(x, axis=-1)
        h = _gelu(torch.einsum("bsd,df->bsf", y, w1) + b1)
        return torch.einsum("bsf,fd->bsd", h, w2) + b2

    x = A_x
    xn = _layernorm(x, axis=-1)
    s = _A_ref(xn, A_k_cache, A_v_cache, A_wq, A_wo)
    g = _silu(_B_ref(xn, B_w1, B_b1, B_w2, B_b2))
    return x + s * g
```

```python
import re

TRANS = ("v_exp_f32","v_log_f32","v_rcp_f32","v_rsq_f32","v_sqrt_f32","v_sin_f32","v_cos_f32")

def regs_of(tok):
    tok = tok.strip()
    neg = tok.lstrip("-")
    m = re.fullmatch(r"abs\((.*)\)", neg)
    if m: neg = m.group(1)
    m = re.fullmatch(r"([vs])(\d+)", neg)
    if m: return [(m.group(1), int(m.group(2)))]
    m = re.fullmatch(r"([vs])\[(\d+):(\d+)\]", neg)
    if m: return [(m.group(1), i) for i in range(int(m.group(2)), int(m.group(3))+1)]
    if neg == "vcc": return [("s","vcc")]
    if neg in ("exec","exec_lo","exec_hi"): return [("s","exec")]
    if neg == "m0": return [("s","m0")]
    return []

class Ins:
    def __init__(self, text):
        self.text = text
        t = text.split(";")[0].strip()
        self.label = t.endswith(":")
        self.directive = t.startswith(".")
        self.op = ""
        self.w = []; self.r = []
        if self.label or self.directive or not t: return
        parts = t.split(None, 1)
        self.op = op = parts[0]
        rest = parts[1] if len(parts) > 1 else ""
        ops = []; cur = ""; d = 0
        for ch in rest:
            if ch == "[": d += 1
            if ch == "]": d -= 1
            if ch == "," and d == 0: ops.append(cur); cur = ""
            else: cur += ch
        if cur.strip(): ops.append(cur)
        ops = [o.strip() for o in ops]
        if ops:
            last = ops[-1].split()
            self.mods = " ".join(last[1:])
            ops[-1] = last[0]
        else: self.mods = ""
        R = [regs_of(o) for o in ops]
        flat = lambda L: [x for l in L for x in l]
        self.valu = op.startswith("v_") and not op.startswith("v_mfma")
        self.mfma = op.startswith("v_mfma")
        self.vmem = op.startswith(("global_","buffer_"))
        self.ds = op.startswith("ds_")
        self.salu = op.startswith("s_")
        self.dpp = "_dpp" in op
        self.trans = op.replace("_e32","").replace("_e64","") in TRANS
        self.perml = op.startswith("v_permlane")
        self.lds_dma = "load_lds" in op or self.mods.endswith("lds")
        self.widestore = self.vmem and "store" in op and ("x4" in op or "x3" in op)
        self.storedata = []
        if self.vmem:
            if "store" in op:
                self.r = flat(R); self.storedata = R[1] if op.startswith("global") else R[0]
            elif self.lds_dma: self.r = flat(R) + [("s","m0")]
            else:
                self.w = R[0]; self.r = flat(R[1:])
                if "d16" in op: self.r += R[0]
        elif self.ds:
            if "write" in op or "add" in op: self.r = flat(R)
            else: self.w = R[0]; self.r = flat(R[1:])
        elif self.perml:
            self.w = flat(R); self.r = flat(R)
        elif self.valu or self.mfma:
            self.w = R[0]; self.r = flat(R[1:])
            if op.startswith(("v_fmac","v_dot2c","v_writelane")) or self.dpp: self.r += R[0]
            if op.startswith("v_cndmask") and len(ops) == 4: pass
        elif self.salu:
            if op.startswith(("s_cmp","s_cbranch","s_branch","s_waitcnt","s_nop","s_barrier","s_endpgm","s_sleep","s_setprio","s_bitcmp")):
                self.r = flat(R)
            else:
                self.w = R[0] if R else []; self.r = flat(R[1:])
        if self.mfma:
            self.srcC = R[3]; self.srcAB = R[1] + R[2]
    def states(self):
        if self.label or self.directive or not self.op: return 0
        if self.op == "s_nop": return int(self.text.split(";")[0].split()[1]) + 1
        return 1

def need(p, c):
    n = 0
    pw = set(p.w); cr = set(c.r); cw = set(c.w)
    vw = {x for x in pw if x[0]=="v"}; sw = {x for x in pw if x[0]=="s"}
    if p.valu:
        if c.dpp and vw & cr: n = max(n,2)
        if c.perml and vw & cr: n = max(n,2)
        if c.mfma and vw & cr: n = max(n,2)
        if c.op.startswith(("v_readlane","v_readfirstlane")) and vw & cr: n = max(n,1)
        if c.valu and sw & cr: n = max(n,2)
        if c.vmem and sw & cr: n = max(n,5)
        if c.salu and sw & cr and not c.op.startswith("s_cbranch"): n = max(n,1)
        if p.trans and c.valu and not c.trans and vw & cr: n = max(n,1)
        if p.trans and (c.mfma) and vw & cr: n = max(n,2)
    if p.mfma:
        if c.mfma:
            if vw & set(c.srcAB): n = max(n,8)
            sc = set(c.srcC)
            if vw & sc and sc != vw: n = max(n,6)
            if vw & cw and not (sc == vw): n = max(n,8)
        elif (c.valu or c.vmem or c.ds) and (vw & (cr|cw)): n = max(n,8)
        if c.valu and set(p.srcC) & cw: n = max(n,3)
    if p.widestore and set(p.storedata) & cw: n = max(n, 2)
    if p.salu and ("s","m0") in pw and c.lds_dma: n = max(n,1)
    return n

class Prog:
    def __init__(self):
        self.ins = []
        self.vm = []
    def __call__(self, text):
        for line in text.strip("\n").split("\n"):
            line = line.strip()
            if line: self.ins.append(Ins(line))
    def vmem(self, text, tag, common=True):
        self(text)
        if common: self.vm.append(tag)
    def wait_vm(self, tag, extra=""):
        idx = max(i for i,t in enumerate(self.vm) if t == tag)
        n = len(self.vm) - 1 - idx
        self(f"s_waitcnt vmcnt({min(n,63)}) {extra}".strip() + f"   ; {tag}")
    def pad(self, report=False):
        out = []; added = 0
        for c in self.ins:
            if c.op:
                dist = 0; req = 0
                for p in reversed(out):
                    if dist >= 8: break
                    if p.op:
                        k = need(p, c) - dist
                        req = max(req, k)
                    dist += p.states()
                if req > 0:
                    out.append(Ins(f"s_nop {req-1}")); added += req
                    if report: print("pad", req, "before", c.text)
            out.append(c)
        self.ins = out
        return added
    def text(self):
        return "\n".join(("" if (i.label or i.directive) else "    ") + i.text for i in self.ins) + "\n"
```

```python
import sys, struct, math
from asmlib import Prog
KN = "recurrent_scan__sliding_block_cached__mixer_channel_mlp__decode_kernel"
def f2u(x): return struct.unpack("<I", struct.pack("<f", x))[0]
def hx(x): return hex(x & 0xffffffff)

QB, HB, MLB, PB, OB, STAMP = 0x10000, 0x20000, 0x30000, 0x40000, 0x80000, 0x100000
XOFF, YOFF, RED, QOFF, SOFF, KOFF, VOFF, LDS_END = 0, 1024, 2048, 6144, 7424, 10240, 43008, 75776

def gen(cfg):
    NT   = cfg.get("nt", "nt")
    ST   = cfg.get("st", "sc1")
    LD   = cfg.get("ld", "sc1")
    diag = cfg.get("diag", False)
    pref = cfg.get("prefetch", True)
    K1   = cfg.get("k1", 4)
    V1   = cfg.get("v1", 4)
    P = Prog()
    nstamp = [0]
    names = []
    def stamp(name):
        if diag:
            i = nstamp[0]; nstamp[0] += 1; names.append(name)
            P(f"s_memtime s[{62+2*i}:{63+2*i}]")
    sG,sJ,sW,sBP = "s30","s31","s32","s33"
    t0,t1,t2,t3 = "s36","s37","s38","s39"
    sT32,sT12,sMHI,sH16,sSL,sSH,sC,sCnt,sML,sR = "s40","s41","s42","s43","s44","s45","s46","s47","s48","s49"
    pX,pK,pV,pWQ,pWO,pW1,pB1,pW2,pB2,pOUT,pWS = ("s[4:5]","s[6:7]","s[8:9]","s[10:11]","s[12:13]","s[16:17]","s[18:19]",
                                               "s[20:21]","s[22:23]","s[24:25]","s[28:29]")
    L = "v1"
    T = [f"v{i}" for i in range(2,10)]
    M = [f"v{i}" for i in range(10,14)]
    vTag, vE = "v14", "v15"
    X, XN, F, D = 16, 20, 24, 32
    WQ, W1, W2, WO, AOP, ACC, KA, G, GH = 40, 56, 64, 72, 88, 104, 112, 144, 160
    QF, S, R, VA = WQ, W1, AOP, KA
    vB1, vB2, vXc, vMc, vLs, vGate, vZero = "v164","v165","v166","v167","v168","v169","v170"
    FG = 172
    nxt = [180]
    def areg(n=1):
        r = nxt[0]; nxt[0] += n
        return f"v{r}" if n == 1 else [f"v{r+i}" for i in range(n)]
    aL16 = areg(); aWQ = areg(4); aW1 = areg(); aK = areg(8); aV = areg(4)
    aXr, aYr, aRedW, aRedR, aQst, aQg, aQw, aQr = [areg() for _ in range(8)]
    aKr = areg(4); aSw, aSr = areg(), areg(); aVr = areg(2)
    aOst, aMLst = areg(), areg(); aOg = areg(2); aMLg = areg(); aWO = areg(2); aW2 = areg()
    aHg, aB1, aR2w, aR2r, aPst, aFg, aCol = [areg() for _ in range(7)]
    g4, n16, l3, c8 = areg(), areg(), areg(), areg()
    NV = (nxt[0] + 7)//8*8
    def v(b, n=1): return f"v{b}" if n == 1 else f"v[{b}:{b+n-1}]"
    DPP = "row_mask:0xf bank_mask:0xf"

    P(f"""
    s_cmp_ge_u32 s2, 256
    s_cbranch_scc1 L_end
    s_load_dwordx16 s[4:19], s[0:1], 0
    s_load_dwordx8 s[20:27], s[0:1], 64
    s_load_dwordx2 s[28:29], s[0:1], 96""")
    if diag: P("s_memrealtime s[60:61]")
    stamp("start")
    if pref:
        P(f"""
        s_getpc_b64 s[34:35]
        L_pc:
        v_lshlrev_b32 {T[0]}, 7, v0
        v_min_u32 {T[0]}, L_end-L_pc, {T[0]}""")
        P.vmem(f"global_load_dword {T[7]}, {T[0]}, s[34:35]", "pref")
    P(f"""
    v_lshrrev_b32 {T[1]}, 6, v0
    v_and_b32 {L}, 63, v0
    v_readfirstlane_b32 {sW}, {T[1]}
    s_and_b32 {sG}, s2, 7
    s_lshr_b32 {sJ}, s2, 3
    v_lshrrev_b32 {g4}, 4, {L}
    v_and_b32 {n16}, 15, {L}
    v_lshrrev_b32 {l3}, 3, {L}
    v_and_b32 {c8}, 7, {L}
    v_lshlrev_b32 {aL16}, 4, {L}
    v_mov_b32 {vZero}, 0
    s_cmp_lt_u32 {sG}, 7
    s_cselect_b32 {sML}, 1, 0
    s_and_b32 {t0}, {sJ}, 3
    s_lshl_b32 {t0}, {t0}, 20
    s_lshl_b32 {t1}, {sW}, 18
    s_add_u32 {t0}, {t0}, {t1}
    s_lshl_b32 {t1}, {sG}, 3
    s_lshr_b32 {t2}, {sJ}, 2
    s_add_u32 {t1}, {t1}, {t2}
    s_lshl_b32 {t1}, {t1}, 7
    s_add_u32 {t0}, {t0}, {t1}
    v_lshlrev_b32 {T[0]}, 4, {c8}
    v_lshl_or_b32 {T[1]}, {l3}, 15, {T[0]}
    v_add_u32 {aWQ[0]}, {t0}, {T[1]}
    v_add_u32 {aWQ[1]}, 0x2000, {aWQ[0]}
    v_add_u32 {aWQ[2]}, 0x4000, {aWQ[0]}
    v_add_u32 {aWQ[3]}, 0x6000, {aWQ[0]}
    s_and_b32 {t0}, {sJ}, 7
    s_lshl_b32 {t0}, {t0}, 2
    s_add_u32 {t0}, {t0}, {sW}
    s_mul_i32 {t0}, {t0}, {16*3584}
    s_lshl_b32 {t1}, {sG}, 2
    s_lshr_b32 {t2}, {sJ}, 3
    s_add_u32 {t1}, {t1}, {t2}
    s_lshl_b32 {t1}, {t1}, 7
    s_add_u32 {t0}, {t0}, {t1}
    v_mul_u32_u24 {T[1]}, 7168, {l3}
    v_add3_u32 {T[1]}, {T[1]}, {T[0]}, {t0}
    v_mul_u32_u24 {aW1}, {sML}, {T[1]}
    s_lshl_b32 {t0}, {sG}, 23
    s_lshl_b32 {t1}, {sJ}, 15
    s_add_u32 {t0}, {t0}, {t1}
    s_lshl_b32 {t1}, {sW}, 13
    s_add_u32 {t0}, {t0}, {t1}
    s_add_u32 {t3}, {t0}, 0x700000
    s_add_u32 {t1}, {t1}, {KOFF}
    s_mov_b32 m0, {t1}
    v_xor_b32 {T[1]}, {n16}, {g4}
    v_lshlrev_b32 {T[1]}, 4, {T[1]}
    v_lshl_or_b32 {T[1]}, {g4}, 8, {T[1]}
    v_or_b32 {aK[0]}, {t3}, {T[1]}
    v_xor_b32 {aK[1]}, 64, {aK[0]}
    v_xor_b32 {aK[2]}, 0x80, {aK[0]}
    v_xor_b32 {aK[3]}, 0xc0, {aK[0]}
    s_waitcnt lgkmcnt(0)""")
    stamp("kernarg")
    P.vmem(f"global_load_dwordx4 {v(X,4)}, {aL16}, {pX}", "x")
    P.vmem(f"global_load_dword {vE}, {vZero}, {pWS}", "e")
    for u in range(4): P.vmem(f"global_load_dwordx4 {v(WQ+4*u,4)}, {aWQ[u]}, {pWQ} {NT}", "wq")
    for u in range(2): P.vmem(f"global_load_dwordx4 {v(W1+4*u,4)}, {aW1}, {pW1} offset:{u*3584} {NT}", "w1")
    def kload(i):
        if i == 4:
            P(f"s_lshl_b32 {t1}, {sW}, 13\ns_add_u32 m0, {t1}, {KOFF+4096}")
        P.vmem(f"global_load_lds_dwordx4 {aK[i]}, {pK} offset:{(i&3)*1024} {NT}", "k")
    def vload(i):
        if i in (0,4):
            P(f"s_lshl_b32 {t1}, {sW}, 13\ns_add_u32 m0, {t1}, {VOFF+i*1024}")
        P.vmem(f"global_load_lds_dwordx4 {aV[(i&1)+2*(i>>2)]}, {pV} offset:{(i&3)*1024} {NT}", "v")
    for i in range(min(K1,4)): kload(i)
    for i in range(4): P(f"v_xor_b32 {aK[4+i]}, 0x1000, {aK[i]}")
    for i in range(4,K1): kload(i)
    stamp("issued1")
    P(f"""
    s_lshl_b32 {sBP}, {sG}, 5
    s_add_u32 {sBP}, {sBP}, {sJ}
    s_mov_b32 {sMHI}, 0xfffff000
    s_mov_b32 {sH16}, 0xffff0000
    s_mov_b32 {sSL}, 0x01000100
    s_mov_b32 {sSH}, 0x03020302
    s_mov_b32 {sC}, {hx(f2u(128**-0.5*math.log2(math.e)))}
    s_mov_b32 {sCnt}, 0
    v_lshlrev_b32 {T[1]}, 1, {g4}
    v_xor_b32 {T[1]}, {n16}, {T[1]}
    v_lshlrev_b32 {T[1]}, 4, {T[1]}
    v_lshl_or_b32 {T[1]}, {g4}, 8, {T[1]}
    v_or_b32 {aV[0]}, {t3}, {T[1]}
    v_xor_b32 {aV[1]}, 0x80, {aV[0]}
    v_xor_b32 {aV[2]}, 0x1000, {aV[0]}
    v_xor_b32 {aV[3]}, 0x1080, {aV[0]}
    s_lshr_b32 {t0}, {sJ}, 2
    s_lshl_b32 {t0}, {t0}, 2
    s_add_u32 {t0}, {t0}, {sW}
    s_lshl_b32 {t0}, {t0}, 3
    s_lshl_b32 {t1}, {sG}, 8
    s_add_u32 {t0}, {t0}, {t1}            ; 256g + 32*(j>>2) + 8w
    v_and_b32 {T[0]}, 1, {L}
    v_lshl_add_u32 {T[1]}, {T[0]}, 2, {g4}
    v_add_lshl_u32 {T[1]}, {T[1]}, {t0}, 1
    v_mul_u32_u24 {aB1}, {sML}, {T[1]}
    v_add_u32 {T[1]}, {t0}, {g4}
    v_lshlrev_b32 {T[1]}, 10, {T[1]}
    v_lshl_add_u32 {T[1]}, {n16}, 4, {T[1]}
    s_and_b32 {t2}, {sJ}, 3
    s_lshl_b32 {t2}, {t2}, 8              ; cq*256
    v_add_u32 {T[1]}, {t2}, {T[1]}
    v_mul_u32_u24 {T[1]}, {sML}, {T[1]}
    v_add_u32 {aW2}, 0x1000, {T[1]}
    s_lshr_b32 {t0}, {sBP}, 2
    s_lshl_b32 {t0}, {t0}, 2
    s_add_u32 {t0}, {t0}, {sW}
    s_lshl_b32 {t0}, {t0}, 14
    s_add_u32 {t0}, {t0}, {t2}
    s_add_u32 {t0}, {t0}, 0x1000
    v_lshlrev_b32 {T[1]}, 10, {g4}
    v_lshl_add_u32 {T[1]}, {n16}, 4, {T[1]}
    v_add_u32 {aWO[0]}, {t0}, {T[1]}
    v_add_u32 {aWO[1]}, 0x2000, {aWO[0]}
    s_and_b32 {t0}, {sJ}, 15
    s_lshl_b32 {t1}, {sG}, 4
    s_add_u32 {t0}, {t0}, {t1}
    s_lshl_b32 {t0}, {t0}, 2              ; 4f
    v_add_lshl_u32 {aCol}, {g4}, {t0}, 1
    v_mov_b32 {vB1}, 0
    v_mov_b32 {vB2}, 0
    v_mov_b32 {vXc}, 0""")
    P.vmem(f"global_load_short_d16_hi {vB1}, {aB1}, {pB1}", "small")
    P.vmem(f"global_load_short_d16_hi {vB2}, {aCol}, {pB2}", "small")
    P.vmem(f"global_load_short_d16_hi {vXc}, {aCol}, {pX}", "small")
    P(f"""
    v_lshlrev_b32 {T[1]}, 4, {T[0]}
    v_mov_b32 {T[2]}, 0xffff
    v_lshlrev_b32 {T[1]}, {T[1]}, {T[2]}
    v_bfe_u32 {T[2]}, {L}, 1, 2
    v_cmp_eq_u32 s[50:51], 0, {T[2]}
    v_cmp_eq_u32 s[52:53], 1, {T[2]}
    v_cmp_eq_u32 s[54:55], 2, {T[2]}
    v_cmp_eq_u32 s[56:57], 3, {T[2]}
    v_cndmask_b32 {M[0]}, 0, {T[1]}, s[50:51]
    v_cndmask_b32 {M[1]}, 0, {T[1]}, s[52:53]
    v_cndmask_b32 {M[2]}, 0, {T[1]}, s[54:55]
    v_cndmask_b32 {M[3]}, 0, {T[1]}, s[56:57]
    s_and_b32 {t0}, {sJ}, 3
    s_lshl_b32 {t0}, {t0}, 2
    s_add_u32 {t0}, {t0}, {sW}
    s_lshl_b32 {t0}, {t0}, 6
    v_lshl_add_u32 {aXr}, {l3}, 3, {t0}
    s_and_b32 {t0}, {sJ}, 7
    s_lshl_b32 {t0}, {t0}, 2
    s_add_u32 {t0}, {t0}, {sW}
    s_lshl_b32 {t0}, {t0}, 5
    s_add_u32 {t0}, {t0}, {YOFF}
    v_lshl_add_u32 {aYr}, {l3}, 2, {t0}
    v_lshrrev_b32 {T[3]}, 5, {L}          ; l>>5
    v_and_b32 {T[4]}, 1, {g4}             ; (l>>4)&1
    s_lshl_b32 {t0}, {sW}, 9
    s_add_u32 {t0}, {t0}, {RED}
    v_lshlrev_b32 {T[1]}, 8, {T[3]}
    v_lshl_add_u32 {T[1]}, {c8}, 5, {T[1]}
    v_lshl_add_u32 {T[1]}, {T[4]}, 4, {T[1]}
    v_add_u32 {aRedW}, {t0}, {T[1]}
    v_lshlrev_b32 {T[1]}, 5, {n16}
    v_lshl_add_u32 {T[1]}, {g4}, 4, {T[1]}
    v_add_u32 {aR2w}, {t0}, {T[1]}
    v_lshlrev_b32 {T[1]}, 3, {L}
    v_add_u32 {aR2r}, {RED}, {T[1]}
    s_lshl_b32 {t0}, {sBP}, 10
    s_add_u32 {t0}, {t0}, {PB}
    v_add_u32 {aPst}, {t0}, {T[1]}
    s_lshl_b32 {t0}, {sW}, 11
    s_add_u32 {t0}, {t0}, {RED}
    v_lshl_add_u32 {aRedR}, {L}, 2, {t0}
    s_lshl_b32 {t0}, {sW}, 16
    s_lshl_b32 {t1}, {sBP}, 8
    s_add_u32 {t0}, {t0}, {t1}
    s_add_u32 {t0}, {t0}, {QB}
    v_lshl_add_u32 {aQst}, {L}, 2, {t0}
    s_lshl_b32 {t0}, {sG}, 2
    s_add_u32 {t0}, {t0}, {sW}
    s_lshl_b32 {t0}, {t0}, 11
    s_add_u32 {t0}, {t0}, {QB}
    v_lshlrev_b32 {T[1]}, 10, {T[4]}
    v_lshl_add_u32 {T[1]}, {T[3]}, 9, {T[1]}
    v_lshl_add_u32 {T[1]}, {n16}, 4, {T[1]}
    v_add_u32 {aQg}, {t0}, {T[1]}
    s_mul_i32 {t0}, {sW}, 272
    s_add_u32 {t0}, {t0}, {QOFF}
    v_and_b32 {T[1]}, 31, {L}
    v_lshlrev_b32 {T[1]}, 3, {T[1]}
    v_lshl_add_u32 {T[1]}, {T[3]}, 2, {T[1]}
    v_add_u32 {aQw}, {t0}, {T[1]}
    v_and_b32 {T[5]}, 3, {L}              ; l&3
    v_mul_u32_u24 {T[1]}, 272, {T[5]}
    v_lshl_add_u32 {T[1]}, {g4}, 4, {T[1]}
    v_add_u32 {aQr}, {QOFF}, {T[1]}
    ; K fragments
    s_lshl_b32 {t0}, {sW}, 13
    s_add_u32 {t0}, {t0}, {KOFF}
    v_xor_b32 {T[1]}, {n16}, {g4}
    v_lshlrev_b32 {T[1]}, 4, {T[1]}
    v_lshl_add_u32 {T[1]}, {n16}, 8, {T[1]}
    v_add_u32 {aKr[0]}, {t0}, {T[1]}
    v_xor_b32 {aKr[1]}, 64, {aKr[0]}
    v_xor_b32 {aKr[2]}, 0x80, {aKr[0]}
    v_xor_b32 {aKr[3]}, 0xc0, {aKr[0]}
    s_lshl_b32 {t0}, {sW}, 7
    s_add_u32 {t1}, {t0}, {SOFF}
    v_mul_u32_u24 {T[1]}, 528, {n16}
    v_lshl_add_u32 {T[1]}, {g4}, 4, {T[1]}
    v_add_u32 {aSw}, {t1}, {T[1]}
    v_mul_u32_u24 {T[1]}, 528, {T[5]}
    v_lshl_add_u32 {T[1]}, {g4}, 4, {T[1]}
    v_lshrrev_b32 {T[2]}, 2, {n16}
    v_lshl_add_u32 {T[1]}, {T[2]}, 7, {T[1]}
    v_add_u32 {aSr}, {SOFF}, {T[1]}
    s_lshl_b32 {t1}, {sBP}, 11
    s_add_u32 {t1}, {t1}, {t0}
    s_add_u32 {t1}, {t1}, {OB}
    v_lshlrev_b32 {T[1]}, 9, {n16}
    v_lshl_add_u32 {T[1]}, {g4}, 4, {T[1]}
    v_add_u32 {aOst}, {t1}, {T[1]}
    s_lshl_b32 {t1}, {sBP}, 7
    s_add_u32 {t1}, {t1}, {MLB}
    v_lshl_add_u32 {aMLst}, {n16}, 4, {t1}
    v_lshrrev_b32 {T[6]}, 2, {L}          ; l>>2
    v_and_b32 {T[1]}, 7, {T[6]}
    s_lshl_b32 {t1}, {sW}, 1
    v_xor_b32 {T[1]}, {t1}, {T[1]}
    v_lshlrev_b32 {T[1]}, 5, {T[1]}
    v_lshl_add_u32 {T[1]}, {T[6]}, 8, {T[1]}
    v_lshl_add_u32 {T[1]}, {T[5]}, 3, {T[1]}
    v_add_u32 {aVr[0]}, {VOFF}, {T[1]}
    v_xor_b32 {aVr[1]}, 32, {aVr[0]}
    ; o / (m,l) gather
    s_lshl_b32 {t0}, {sG}, 16
    s_lshr_b32 {t1}, {sJ}, 2
    s_lshl_b32 {t1}, {t1}, 2
    s_add_u32 {t1}, {t1}, {sW}
    s_lshl_b32 {t1}, {t1}, 6
    s_add_u32 {t0}, {t0}, {t1}
    s_add_u32 {t0}, {t0}, {OB}
    v_lshlrev_b32 {T[1]}, 11, {T[6]}
    v_lshl_add_u32 {T[1]}, {T[5]}, 4, {T[1]}
    v_add_u32 {aOg[0]}, {t0}, {T[1]}
    v_add_u32 {aOg[1]}, 0x8000, {aOg[0]}
    s_lshl_b32 {t0}, {sG}, 12
    s_lshr_b32 {t1}, {sJ}, 3
    s_lshl_b32 {t1}, {t1}, 4
    s_add_u32 {t0}, {t0}, {t1}
    s_add_u32 {t0}, {t0}, {MLB}
    v_lshl_add_u32 {aMLg}, {T[6]}, 7, {t0}
    ; h gather
    s_lshl_b32 {t0}, {sG}, 2
    s_lshr_b32 {t1}, {sJ}, 3
    s_add_u32 {t0}, {t0}, {t1}
    s_lshl_b32 {t0}, {t0}, 11
    s_bfe_u32 {t1}, {sJ}, 0x10002
    s_lshl_b32 {t1}, {t1}, 2
    s_add_u32 {t1}, {t1}, {sW}
    s_lshl_b32 {t1}, {t1}, 5
    s_add_u32 {t0}, {t0}, {t1}
    s_add_u32 {t0}, {t0}, {HB}
    v_lshlrev_b32 {T[1]}, 8, {l3}
    v_lshl_add_u32 {T[1]}, {T[0]}, 4, {T[1]}
    v_add_u32 {aHg}, {t0}, {T[1]}
    s_lshr_b32 {t0}, {sG}, 1
    s_lshl_b32 {t0}, {t0}, 10
    s_and_b32 {t1}, {sG}, 1
    s_lshl_b32 {t1}, {t1}, 4
    s_and_b32 {t2}, {sJ}, 15
    s_add_u32 {t1}, {t1}, {t2}
    s_lshl_b32 {t1}, {t1}, 4
    s_add_u32 {t0}, {t0}, {t1}
    s_add_u32 {t0}, {t0}, {PB}
    v_lshlrev_b32 {T[1]}, 15, {l3}
    v_lshl_add_u32 {T[1]}, {c8}, 12, {T[1]}
    v_add_u32 {aFg}, {t0}, {T[1]}""")
    stamp("addr")
    def reduce64(r):
        for k in (8,4,2,1): P(f"v_add_f32_dpp {r}, {r}, {r} row_ror:{k} {DPP}")
        P(f"v_add_f32_dpp {r}, {r}, {r} row_bcast:15 row_mask:0xa bank_mask:0xf")
        P(f"v_add_f32_dpp {r}, {r}, {r} row_bcast:31 row_mask:0xc bank_mask:0xf")
        P(f"v_readlane_b32 {sR}, {r}, 63")
    def rbf(d, s):
        P(f"v_cvt_pk_bf16_f32 {d}, {s}, {s}\nv_and_b32 {d}, {sH16}, {d}")
    def unpack(dst, src):
        for i in range(4):
            P(f"v_lshlrev_b32 {v(dst+2*i)}, 16, {v(src+i)}\nv_and_b32 {v(dst+2*i+1)}, {sH16}, {v(src+i)}")
    BC = "op_sel_hi:[1,0]"
    def layernorm(src, dst):
        unpack(F, src)
        P(f"""
        v_pk_add_f32 {v(D,2)}, {v(F,2)}, {v(F+2,2)}
        v_pk_add_f32 {v(D+2,2)}, {v(F+4,2)}, {v(F+6,2)}
        v_pk_add_f32 {v(D,2)}, {v(D,2)}, {v(D+2,2)}
        v_add_f32 {T[0]}, {v(D)}, {v(D+1)}""")
        reduce64(T[0])
        P(f"v_mov_b32 {T[2]}, {hx(f2u(1/512))}\nv_mul_f32 {T[2]}, {sR}, {T[2]}")
        for i in range(4): P(f"v_pk_add_f32 {v(D+2*i,2)}, {v(F+2*i,2)}, v[4:5] {BC} neg_lo:[0,1] neg_hi:[0,1]")
        P(f"v_pk_mul_f32 v[2:3], {v(D,2)}, {v(D,2)}")
        for i in range(1,4): P(f"v_pk_fma_f32 v[2:3], {v(D+2*i,2)}, {v(D+2*i,2)}, v[2:3]")
        P(f"v_add_f32 {T[0]}, {T[0]}, {T[1]}")
        rbf(T[2], T[2])
        reduce64(T[0])
        for i in range(4): P(f"v_pk_add_f32 {v(D+2*i,2)}, {v(F+2*i,2)}, v[4:5] {BC} neg_lo:[0,1] neg_hi:[0,1]")
        P(f"v_mov_b32 {T[2]}, {hx(f2u(1/512))}\nv_mul_f32 {T[2]}, {sR}, {T[2]}")
        rbf(T[2], T[2])
        P(f"v_add_f32 {T[2]}, {hx(f2u(1e-5))}, {T[2]}")
        rbf(T[2], T[2])
        P(f"v_sqrt_f32 {T[2]}, {T[2]}")
        for i in range(4): P(f"v_cvt_pk_bf16_f32 {v(dst+i)}, {v(D+2*i)}, {v(D+2*i+1)}")
        rbf(T[2], T[2])
        P(f"v_rcp_f32 {T[2]}, {T[2]}")
        unpack(D, dst)
        for i in range(4): P(f"v_pk_mul_f32 {v(D+2*i,2)}, {v(D+2*i,2)}, v[4:5] {BC}")
        for i in range(4): P(f"v_cvt_pk_bf16_f32 {v(dst+i)}, {v(D+2*i)}, {v(D+2*i+1)}")
    P.wait_vm("e")
    stamp("x")
    P(f"""
    v_readfirstlane_b32 {t0}, {vE}
    s_mul_i32 {t0}, {t0}, 1664525
    s_add_u32 {sT32}, {t0}, 1013904223
    s_and_b32 {sT12}, {sT32}, 0xfff
    v_mov_b32 {vTag}, {sT12}""")
    layernorm(X, XN)
    P(f"ds_write_b128 {aL16}, {v(XN,4)} offset:{XOFF}\ns_waitcnt lgkmcnt(0)\nds_read_b64 v[8:9], {aXr}")
    layernorm(XN, X)
    P(f"ds_write_b128 {aL16}, {v(X,4)} offset:{YOFF}\ns_waitcnt lgkmcnt(0)\nds_read_b32 {vE}, {aYr}")
    for u in range(4):
        src = "v8" if u < 2 else "v9"
        P(f"v_perm_b32 {T[0]}, {src}, {src}, {sSL if u%2==0 else sSH}")
        for d in range(4): P(f"v_and_b32 {v(AOP+4*u+d)}, {T[0]}, {M[d]}")
    stamp("ln")
    P.wait_vm("wq")
    stamp("wq")
    for u in range(4):
        P(f"v_mfma_f32_16x16x32_bf16 {v(ACC,4)}, {v(AOP+4*u,4)}, {v(WQ+4*u,4)}, {'0' if u==0 else v(ACC,4)}")
    P("s_waitcnt lgkmcnt(0)")
    for u in range(2):
        P(f"v_perm_b32 {T[0]}, {vE}, {vE}, {sSL if u%2==0 else sSH}")
        for d in range(4): P(f"v_and_b32 {v(F+4*u+d)}, {T[0]}, {M[d]}")
    P.wait_vm("w1")
    for u in range(2):
        P(f"v_mfma_f32_16x16x32_bf16 {v(ACC+4,4)}, {v(F+4*u,4)}, {v(W1+4*u,4)}, {'0' if u==0 else v(ACC+4,4)}")
    for i in range(K1,8): kload(i)
    P(f"""
    s_mov_b32 exec_lo, 0x00ff00ff
    s_mov_b32 exec_hi, 0xff00ff00
    ds_write_b128 {aRedW}, {v(ACC,4)}
    ds_write_b128 {aRedW}, {v(ACC+4,4)} offset:2048
    s_mov_b64 exec, -1
    s_waitcnt lgkmcnt(0)
    s_barrier
    s_cmp_gt_u32 {sW}, {sML}
    s_cbranch_scc1 L_qh_done""")
    for k in range(4): P(f"ds_read2st64_b32 {v(F+2*k,2)}, {aRedR} offset0:{2*k} offset1:{2*k+1}")
    P(f"""
    s_waitcnt lgkmcnt(0)
    v_pk_add_f32 {v(F,2)}, {v(F,2)}, {v(F+2,2)}
    v_pk_add_f32 {v(F+4,2)}, {v(F+4,2)}, {v(F+6,2)}
    v_pk_add_f32 {v(F,2)}, {v(F,2)}, {v(F+4,2)}
    v_add_f32 {T[0]}, {v(F)}, {v(F+1)}
    v_and_or_b32 {T[0]}, {T[0]}, {sMHI}, {vTag}""")
    P.vmem(f"global_store_dword {aQst}, {T[0]}, {pWS} {ST}", "qst", common=False)
    P("L_qh_done:")
    stamp("qpub")
    for i in range(V1): vload(i)
    P.wait_vm("k")
    stamp("k")
    def qpoll(common):
        for a in range(2): P.vmem(f"global_load_dwordx4 {v(G+4*a,4)}, {aQg}, {pWS} offset:{256*a} {LD}", "qg", common)
    def hpoll(common):
        P.vmem(f"global_load_dwordx4 {v(GH,4)}, {aHg}, {pWS} {LD}", "hg", common)
    qpoll(True); hpoll(True)
    for i in range(V1,8): vload(i)
    for t in range(2):
        for ks in range(4): P(f"ds_read_b128 {v(KA+16*t+4*ks,4)}, {aKr[ks]} offset:{4096*t}")
    def check(regs, extra=[]):
        for r in regs: P(f"v_xor_b32 {r}, {sT12}, {r}")
        acc = T[0]; rs = list(regs)
        P(f"v_or3_b32 {acc}, {rs[0]}, {rs[1]}, {rs[2]}"); rs = rs[3:]
        while len(rs) >= 2:
            P(f"v_or3_b32 {acc}, {acc}, {rs[0]}, {rs[1]}"); rs = rs[2:]
        if rs: P(f"v_or_b32 {acc}, {acc}, {rs[0]}")
        P(f"v_and_b32 {acc}, 0xfff, {acc}")
        for r in extra: P(f"v_xor_b32 {r}, {sT32}, {r}")
        ex = list(extra)
        while ex:
            P(f"v_or3_b32 {acc}, {acc}, {ex[0]}, {ex[1]}"); ex = ex[2:]
        P(f"v_cmp_ne_u32 vcc, 0, {acc}")
    tails = []
    def poll(name, tag, reissue, regs, extra=[]):
        P.wait_vm(tag)
        P(f"L_{name}_chk:")
        check(regs, extra)
        P(f"s_cbranch_vccnz L_{name}_retry")
        def tail():
            P(f"L_{name}_retry:\ns_add_u32 {sCnt}, {sCnt}, 1\ns_cmp_gt_u32 {sCnt}, 0x200000\ns_cbranch_scc1 L_end")
            reissue(False)
            P(f"s_waitcnt vmcnt(0)\ns_branch L_{name}_chk")
        tails.append(tail)
    poll("q", "qg", qpoll, [v(G+i) for i in range(8)])
    stamp("qgot")
    P(f"""
    v_pk_add_f32 {v(G,2)}, {v(G,2)}, {v(G+4,2)}
    v_pk_add_f32 {v(G+2,2)}, {v(G+2,2)}, {v(G+6,2)}
    v_permlane32_swap_b32 {v(G)}, {v(G+2)}
    v_permlane32_swap_b32 {v(G+1)}, {v(G+3)}
    v_pk_add_f32 {v(G,2)}, {v(G,2)}, {v(G+2,2)}
    v_cvt_pk_bf16_f32 {T[0]}, {v(G)}, {v(G+1)}
    ds_write_b32 {aQw}, {T[0]}
    s_waitcnt lgkmcnt(0)
    s_barrier""")
    for ks in range(4): P(f"ds_read_b128 {v(QF+4*ks,4)}, {aQr} offset:{64*ks}")
    for ks in range(4):
        P(f"s_waitcnt lgkmcnt({3-ks})")
        for t in range(2):
            P(f"v_mfma_f32_16x16x32_bf16 {v(ACC+4*t,4)}, {v(KA+16*t+4*ks,4)}, {v(QF+4*ks,4)}, {'0' if ks==0 else v(ACC+4*t,4)}")
    P(f"""
    s_mov_b32 exec_lo, 0x000f000f
    s_mov_b32 exec_hi, 0x000f000f
    ds_write_b128 {aSw}, {v(ACC,4)}
    ds_write_b128 {aSw}, {v(ACC+4,4)} offset:64
    s_mov_b64 exec, -1
    s_waitcnt lgkmcnt(0)
    s_barrier
    ds_read_b128 {v(S,4)}, {aSr}
    ds_read_b128 {v(S+4,4)}, {aSr} offset:64""")
    for t in range(2): P.vmem(f"global_load_dwordx4 {v(W2+4*t,4)}, {aW2}, {pW2} offset:{-4096+4096*t} {NT}", "w2")
    for t in range(4): P.vmem(f"global_load_dwordx4 {v(WO+4*t,4)}, {aWO[t>>1]}, {pWO} offset:{-4096+4096*(t&1)} {NT}", "wo")
    def allred(op, r, tmp, bits):
        for b in bits:
            if b == 2: P(f"{op}_dpp {r}, {r}, {r} row_ror:4 {DPP}")
            if b == 3: P(f"{op}_dpp {r}, {r}, {r} row_ror:8 {DPP}")
            if b == 4: P(f"v_mov_b32 {tmp}, {r}\nv_permlane16_swap_b32 {r}, {tmp}\n{op} {r}, {r}, {tmp}")
            if b == 5: P(f"v_mov_b32 {tmp}, {r}\nv_permlane32_swap_b32 {r}, {tmp}\n{op} {r}, {r}, {tmp}")
    P(f"""
    s_waitcnt lgkmcnt(0)
    v_max3_f32 {vMc}, {v(S)}, {v(S+1)}, {v(S+2)}
    v_max3_f32 {vMc}, {vMc}, {v(S+3)}, {v(S+4)}
    v_max3_f32 {vMc}, {vMc}, {v(S+5)}, {v(S+6)}
    v_max_f32 {vMc}, {vMc}, {v(S+7)}""")
    allred("v_max_f32", vMc, T[0], (2,3,4,5))
    P(f"v_mul_f32 {vMc}, {sC}, {vMc}")
    for i in range(8): P(f"v_fma_f32 {v(S+i)}, {v(S+i)}, {sC}, -{vMc}")
    for i in range(8): P(f"v_exp_f32 {v(S+i)}, {v(S+i)}")
    for i in range(4): P(f"v_cvt_pk_bf16_f32 {v(R+i)}, {v(S+2*i)}, {v(S+2*i+1)}")
    P(f"""
    v_pk_add_f32 {v(S,2)}, {v(S,2)}, {v(S+2,2)}
    v_pk_add_f32 {v(S+4,2)}, {v(S+4,2)}, {v(S+6,2)}""")
    for ks in range(1,4):
        for i in range(4): P(f"v_mov_b32_dpp {v(R+4*ks+i)}, {v(R+i)} row_ror:{16-4*ks} {DPP}")
    P(f"""
    v_pk_add_f32 {v(S,2)}, {v(S,2)}, {v(S+4,2)}
    v_add_f32 {vLs}, {v(S)}, {v(S+1)}""")
    allred("v_add_f32", vLs, T[0], (2,3,4,5))
    stamp("softmax")
    P.wait_vm("v")
    stamp("v")
    P("s_barrier")
    for ks in range(4):
        for t in range(2):
            for hf in range(2):
                P(f"ds_read_b64_tr_b16 {v(VA+8*ks+4*t+2*hf,2)}, {aVr[t]} offset:{8192*ks+4096*hf}")
    for ks in range(4):
        for t in range(2):
            P(f"s_waitcnt lgkmcnt({min(15,14-4*ks-2*t)})")
            P(f"v_mfma_f32_16x16x32_bf16 {v(ACC+4*t,4)}, {v(VA+8*ks+4*t,4)}, {v(R+4*ks,4)}, {'0' if ks==0 else v(ACC+4*t,4)}")
    P(f"""
    v_mov_b32 {v(F)}, {vMc}
    v_mov_b32 {v(F+1)}, {vLs}
    v_mov_b32 {v(F+2)}, {sT32}
    v_mov_b32 {v(F+3)}, {sT32}
    s_cmp_eq_u32 {sW}, 0
    s_mov_b32 exec_lo, 0x000f000f
    s_mov_b32 exec_hi, 0x000f000f""")
    for t in range(2):
        for r in range(4): P(f"v_and_or_b32 {v(ACC+4*t+r)}, {v(ACC+4*t+r)}, {sMHI}, {vTag}")
        P.vmem(f"global_store_dwordx4 {aOst}, {v(ACC+4*t,4)}, {pWS} offset:{64*t} {ST}", "ost")
    P(f"s_cbranch_scc0 L_ml_done\ns_mov_b64 exec, 15")
    P.vmem(f"global_store_dwordx4 {aMLst}, {v(F,4)}, {pWS} {ST}", "mlst", common=False)
    P("L_ml_done:\ns_mov_b64 exec, -1")
    stamp("opub")
    def opoll(common):
        for a in range(2): P.vmem(f"global_load_dwordx4 {v(G+4*a,4)}, {aOg[a]}, {pWS} {LD}", "og", common)
        for a in range(2): P.vmem(f"global_load_dwordx4 {v(G+8+4*a,4)}, {aMLg}, {pWS} offset:{2048*a} {LD}", "og", common)
    def tr4(b, tail_bits):
        P(f"""
        v_permlane32_swap_b32 {v(b)}, {v(b+2)}
        v_permlane32_swap_b32 {v(b+1)}, {v(b+3)}
        v_pk_add_f32 {v(b,2)}, {v(b,2)}, {v(b+2,2)}
        v_permlane16_swap_b32 {v(b)}, {v(b+1)}
        v_add_f32 {v(b)}, {v(b)}, {v(b+1)}""")
        for k in tail_bits: P(f"v_add_f32_dpp {v(b)}, {v(b)}, {v(b)} row_ror:{k} {DPP}")
    def gemv(nt, src, wreg, acc):
        for t in range(nt):
            for d in range(4): P(f"v_and_b32_dpp {v(AOP+4*t+d)}, {src}, {M[d]} quad_perm:[{t},{t},{t},{t}] {DPP}")
        for t in range(nt):
            P(f"v_mfma_f32_16x16x32_bf16 {v(acc,4)}, {v(AOP+4*t,4)}, {v(wreg+4*t,4)}, {'0' if t==0 else v(acc,4)}")
    def redpub(off_lds, off_ws):
        for k in range(4): P(f"ds_read_b64 {v(F+2*k,2)}, {aR2r} offset:{off_lds+512*k}")
        P(f"""
        s_waitcnt lgkmcnt(2)
        v_pk_add_f32 {v(F,2)}, {v(F,2)}, {v(F+2,2)}
        s_waitcnt lgkmcnt(0)
        v_pk_add_f32 {v(F+4,2)}, {v(F+4,2)}, {v(F+6,2)}
        v_pk_add_f32 {v(F,2)}, {v(F,2)}, {v(F+4,2)}
        v_and_or_b32 {v(F)}, {v(F)}, {sMHI}, {vTag}
        v_and_or_b32 {v(F+1)}, {v(F+1)}, {sMHI}, {vTag}""")
        P.vmem(f"global_store_dwordx2 {aPst}, {v(F,2)}, {pWS} offset:{off_ws} {ST}", "pst", common=False)
    P(f"s_cmp_eq_u32 {sML}, 0\ns_cbranch_scc1 L_mlp_done")
    poll("h", "hg", hpoll, [v(GH+i) for i in range(4)])
    tr4(GH, (8,))
    u = v(GH)
    rbf(u, u)
    P.wait_vm("small")
    P(f"v_add_f32 {u}, {u}, {vB1}")
    rbf(u, u)
    k1 = -2*math.sqrt(2/math.pi)*math.log2(math.e)
    P(f"""
    v_mul_f32 {T[0]}, {u}, {u}
    v_mov_b32 {T[1]}, {hx(f2u(k1))}
    v_fmac_f32 {T[1]}, {hx(f2u(k1*0.044715))}, {T[0]}
    v_mul_f32 {T[0]}, {u}, {T[1]}
    v_exp_f32 {T[0]}, {T[0]}
    v_add_f32 {T[0]}, 1.0, {T[0]}
    v_rcp_f32 {T[0]}, {T[0]}
    v_mul_f32 {T[0]}, {u}, {T[0]}
    v_cvt_pk_bf16_f32 {T[0]}, {T[0]}, {T[0]}""")
    P.wait_vm("w2")
    gemv(2, T[0], W2, ACC)
    P(f"""
    s_mov_b32 exec_hi, 0
    ds_write_b128 {aR2w}, {v(ACC,4)} offset:2048
    s_mov_b64 exec, -1
    s_waitcnt lgkmcnt(0)
    s_barrier
    s_cmp_lg_u32 {sW}, 2
    s_cbranch_scc1 L_mlp_done""")
    redpub(2048, 512)
    P("L_mlp_done:")
    stamp("mlp")
    opoll(True)
    poll("o", "og", opoll, [v(G+i) for i in range(8)], [v(G+10), v(G+11), v(G+14), v(G+15)])
    stamp("ogot")
    m0_, l0_, m1_, l1_ = v(G+8), v(G+9), v(G+12), v(G+13)
    P(f"v_max_f32 {T[1]}, {m0_}, {m1_}")
    allred("v_max_f32", T[1], T[0], (2,3,4,5))
    P(f"""
    v_sub_f32 {T[2]}, {m0_}, {T[1]}
    v_sub_f32 {T[4]}, {m1_}, {T[1]}
    v_exp_f32 {T[2]}, {T[2]}
    v_exp_f32 {T[4]}, {T[4]}
    v_mul_f32 {T[1]}, {T[2]}, {l0_}
    v_fmac_f32 {T[1]}, {T[4]}, {l1_}
    v_pk_mul_f32 {v(G,2)}, {v(G,2)}, v[4:5] {BC}
    v_pk_mul_f32 {v(G+2,2)}, {v(G+2,2)}, v[4:5] {BC}
    v_pk_fma_f32 {v(G,2)}, {v(G+4,2)}, v[6:7], {v(G,2)} op_sel_hi:[1,0,1]
    v_pk_fma_f32 {v(G+2,2)}, {v(G+6,2)}, v[6:7], {v(G+2,2)} op_sel_hi:[1,0,1]""")
    allred("v_add_f32", T[1], T[0], (2,3,4,5))
    P(f"v_rcp_f32 {T[1]}, {T[1]}")
    tr4(G, (4,8))
    P(f"v_mul_f32 {T[0]}, {v(G)}, {T[1]}\nv_cvt_pk_bf16_f32 {T[0]}, {T[0]}, {T[0]}")
    gemv(4, T[0], WO, ACC)
    P(f"""
    s_mov_b32 exec_hi, 0
    ds_write_b128 {aR2w}, {v(ACC,4)}
    s_mov_b64 exec, -1
    s_waitcnt lgkmcnt(0)
    s_barrier""")
    stamp("wo")
    P(f"s_cmp_lg_u32 {sW}, 0\ns_cbranch_scc1 L_not0")
    redpub(0, 0)
    P(f"""
    s_branch L_fin
    L_not0:
    s_cmp_lg_u32 {sW}, 1
    s_cbranch_scc1 L_fin
    s_cmp_ge_u32 {sJ}, 16
    s_cbranch_scc1 L_fin""")
    def fm(common):
        P(f"s_mov_b32 exec_hi, 0x00ffffff")
        P.vmem(f"global_load_dwordx4 {v(FG+4,4)}, {aFg}, {pWS} offset:512 {LD}", "fm", common)
        P(f"s_mov_b32 exec_hi, -1")
    def fs(common):
        P.vmem(f"global_load_dwordx4 {v(FG,4)}, {aFg}, {pWS} {LD}", "fs", common)
    def fm_retry(common):
        for i in range(4): P(f"v_mov_b32 {v(FG+4+i)}, {vTag}")
        fm(common)
    fm_retry(True); fs(True)
    poll("fm", "fm", fm_retry, [v(FG+4+i) for i in range(4)])
    tr4(FG+4, (8,4,2,1))
    u = v(FG+4)
    rbf(u, u)
    P(f"v_add_f32 {u}, {u}, {vB2}")
    rbf(u, u)
    P(f"""
    v_mul_f32 {T[0]}, {hx(f2u(-math.log2(math.e)))}, {u}
    v_exp_f32 {T[0]}, {T[0]}
    v_add_f32 {T[0]}, 1.0, {T[0]}
    v_rcp_f32 {T[0]}, {T[0]}
    v_mul_f32 {vGate}, {u}, {T[0]}""")
    rbf(vGate, vGate)
    stamp("gate")
    poll("fs", "fs", fs, [v(FG+i) for i in range(4)])
    stamp("sgot")
    tr4(FG, (8,4,2,1))
    u = v(FG)
    rbf(u, u)
    P(f"v_mul_f32 {u}, {u}, {vGate}")
    rbf(u, u)
    P(f"""
    v_add_f32 {u}, {u}, {vXc}
    v_cvt_pk_bf16_f32 {u}, {u}, {u}
    s_mov_b32 exec_lo, 0x00010001
    s_mov_b32 exec_hi, 0x00010001
    global_store_short {aCol}, {u}, {pOUT}
    s_cmp_lg_u32 s2, 0
    s_cbranch_scc1 L_fin
    s_mov_b64 exec, 1
    v_mov_b32 {T[0]}, {sT32}
    global_store_dword {vZero}, {T[0]}, {pWS}
    L_fin:""")
    if diag:
        P("s_mov_b64 exec, -1\ns_waitcnt vmcnt(0)")
        stamp("end")
        P(f"""
        s_memrealtime s[58:59]
        s_getreg_b32 {t2}, hwreg(HW_REG_XCC_ID)
        s_lshl_b32 {t0}, s2, 2
        s_add_u32 {t0}, {t0}, {sW}
        s_lshl_b32 {t0}, {t0}, 7
        s_add_u32 {t0}, {t0}, {STAMP}
        v_mov_b32 {T[0]}, {t0}
        s_waitcnt lgkmcnt(0)""")
        for i, r in enumerate(["s60", "s58", t2, sCnt] + [f"s{62+2*i}" for i in range(nstamp[0])]):
            P(f"v_mov_b32 {T[1]}, {r}\nglobal_store_dword {T[0]}, {T[1]}, {pWS} offset:{4*i}")
    P("s_endpgm")
    for t in tails: t()
    P("L_end:\ns_endpgm")
    added = P.pad(cfg.get("report", False))
    head = open(cfg.get("ref", "recurrent_scan__sliding_block_cached__mixer_channel_mlp__decode.s.ref")).read().split("\n")
    head = [h for h in head if h.startswith(";") and "@launch" not in h and "Override launch" not in h and "grid=ceil" not in h]
    txt = "\n".join(head) + f"""
; @launch grid=(256,1,1) block=(256,1,1) lds={LDS_END}
.amdgcn_target "amdgcn-amd-amdhsa--gfx950"
.text
.globl {KN}
.p2align 8
.type {KN},@function
{KN}:
""" + P.text() + f""".section .rodata,"a"
.p2align 6
.amdhsa_kernel {KN}
  .amdhsa_next_free_vgpr {NV}
  .amdhsa_next_free_sgpr 102
  .amdhsa_accum_offset {NV}
  .amdhsa_group_segment_fixed_size 0
  .amdhsa_kernarg_size 104
  .amdhsa_user_sgpr_count 2
  .amdhsa_user_sgpr_kernarg_segment_ptr 1
  .amdhsa_system_sgpr_workgroup_id_x 1
.end_amdhsa_kernel
"""
    return txt, names, added

if __name__ == "__main__":
    import json
    out = sys.argv[1]
    cfg = json.loads(sys.argv[2]) if len(sys.argv) > 2 else {}
    txt, names, added = gen(cfg)
    open(out, "w").write(txt)
    if cfg.get("diag"): open(out + ".names", "w").write(" ".join(names))
    print(out, "nops added:", added)
```

```python
import sys, struct, math
from asmlib import Prog
KN = "recurrent_scan__sliding_block_cached__mixer_channel_mlp__decode_kernel"
def f2u(x): return struct.unpack("<I", struct.pack("<f", x))[0]
def hx(x): return hex(x & 0xffffffff)

QB, HB, MLB, PB, OB, STAMP = 0x10000, 0x20000, 0x30000, 0x40000, 0x80000, 0x100000
XOFF, YOFF, RED, QOFF, SOFF, KOFF, VOFF, LDS_END = 0, 1024, 2048, 6144, 7424, 10240, 43008, 75776

def gen(cfg):
    NT   = cfg.get("nt", "nt")
    ST   = cfg.get("st", "sc1")
    LD   = cfg.get("ld", "sc1")
    diag = cfg.get("diag", False)
    pref = cfg.get("prefetch", True)
    K1   = cfg.get("k1", 4)
    V1   = cfg.get("v1", 4)
    P = Prog()
    nstamp = [0]
    names = []
    def stamp(name):
        if diag:
            i = nstamp[0]; nstamp[0] += 1; names.append(name)
            P(f"s_memtime s[{62+2*i}:{63+2*i}]")
    sG,sJ,sW,sBP = "s30","s31","s32","s33"
    t0,t1,t2,t3 = "s36","s37","s38","s39"
    sT32,sT12,sMHI,sH16,sSL,sSH,sC,sCnt,sML,sR = "s40","s41","s42","s43","s44","s45","s46","s47","s48","s49"
    pX,pK,pV,pWQ,pWO,pW1,pB1,pW2,pB2,pOUT,pWS = ("s[4:5]","s[6:7]","s[8:9]","s[10:11]","s[12:13]","s[16:17]","s[18:19]",
                                               "s[20:21]","s[22:23]","s[24:25]","s[28:29]")
    L = "v1"
    T = [f"v{i}" for i in range(2,10)]
    M = [f"v{i}" for i in range(10,14)]
    vTag, vE = "v14", "v15"
    X, XN, F, D = 16, 20, 24, 32
    WQ, W1, W2, WO, AOP, ACC, KA, G, GH = 40, 56, 64, 72, 88, 104, 112, 144, 160
    QF, S, R, VA = WQ, W1, AOP, KA
    vB1, vB2, vXc, vMc, vLs, vGate, vZero = "v164","v165","v166","v167","v168","v169","v170"
    FG = 172
    nxt = [180]
    def areg(n=1):
        r = nxt[0]; nxt[0] += n
        return f"v{r}" if n == 1 else [f"v{r+i}" for i in range(n)]
    aL16 = areg(); aWQ = areg(4); aW1 = areg(); aK = areg(8); aV = areg(4)
    aXr, aYr, aRedW, aRedR, aQst, aQg, aQw, aQr = [areg() for _ in range(8)]
    aKr = areg(4); aSw, aSr = areg(), areg(); aVr = areg(2)
    aOst, aMLst = areg(), areg(); aOg = areg(2); aMLg = areg(); aWO = areg(2); aW2 = areg()
    aHg, aB1, aR2w, aR2r, aPst, aFg, aCol = [areg() for _ in range(7)]
    g4, n16, l3, c8 = areg(), areg(), areg(), areg()
    NV = (nxt[0] + 7)//8*8
    def v(b, n=1): return f"v{b}" if n == 1 else f"v[{b}:{b+n-1}]"
    DPP = "row_mask:0xf bank_mask:0xf"

    P(f"""
    s_cmp_ge_u32 s2, 256
    s_cbranch_scc1 L_end
    s_load_dwordx16 s[4:19], s[0:1], 0
    s_load_dwordx8 s[20:27], s[0:1], 64
    s_load_dwordx2 s[28:29], s[0:1], 96""")
    if diag or cfg.get("spin"): P("s_memrealtime s[60:61]")
    stamp("start")
    if pref:
        P(f"""
        s_getpc_b64 s[34:35]
        L_pc:
        v_lshlrev_b32 {T[0]}, 7, v0
        v_min_u32 {T[0]}, L_end-L_pc, {T[0]}""")
        P.vmem(f"global_load_dword {T[7]}, {T[0]}, s[34:35]", "pref")
    P(f"""
    v_lshrrev_b32 {T[1]}, 6, v0
    v_and_b32 {L}, 63, v0
    v_readfirstlane_b32 {sW}, {T[1]}
    s_and_b32 {sG}, s2, 7
    s_lshr_b32 {sJ}, s2, 3
    v_lshrrev_b32 {g4}, 4, {L}
    v_and_b32 {n16}, 15, {L}
    v_lshrrev_b32 {l3}, 3, {L}
    v_and_b32 {c8}, 7, {L}
    v_lshlrev_b32 {aL16}, 4, {L}
    v_mov_b32 {vZero}, 0
    s_cmp_lt_u32 {sG}, 7
    s_cselect_b32 {sML}, 1, 0
    s_and_b32 {t0}, {sJ}, 3
    s_lshl_b32 {t0}, {t0}, 20
    s_lshl_b32 {t1}, {sW}, 18
    s_add_u32 {t0}, {t0}, {t1}
    s_lshl_b32 {t1}, {sG}, 3
    s_lshr_b32 {t2}, {sJ}, 2
    s_add_u32 {t1}, {t1}, {t2}
    s_lshl_b32 {t1}, {t1}, 7
    s_add_u32 {t0}, {t0}, {t1}
    v_lshlrev_b32 {T[0]}, 4, {c8}
    v_lshl_or_b32 {T[1]}, {l3}, 15, {T[0]}
    v_add_u32 {aWQ[0]}, {t0}, {T[1]}
    v_add_u32 {aWQ[1]}, 0x2000, {aWQ[0]}
    v_add_u32 {aWQ[2]}, 0x4000, {aWQ[0]}
    v_add_u32 {aWQ[3]}, 0x6000, {aWQ[0]}
    s_and_b32 {t0}, {sJ}, 7
    s_lshl_b32 {t0}, {t0}, 2
    s_add_u32 {t0}, {t0}, {sW}
    s_mul_i32 {t0}, {t0}, {16*3584}
    s_lshl_b32 {t1}, {sG}, 2
    s_lshr_b32 {t2}, {sJ}, 3
    s_add_u32 {t1}, {t1}, {t2}
    s_lshl_b32 {t1}, {t1}, 7
    s_add_u32 {t0}, {t0}, {t1}
    v_mul_u32_u24 {T[1]}, 7168, {l3}
    v_add3_u32 {T[1]}, {T[1]}, {T[0]}, {t0}
    v_mul_u32_u24 {aW1}, {sML}, {T[1]}
    s_lshl_b32 {t0}, {sG}, 23
    s_lshl_b32 {t1}, {sJ}, 15
    s_add_u32 {t0}, {t0}, {t1}
    s_lshl_b32 {t1}, {sW}, 13
    s_add_u32 {t0}, {t0}, {t1}
    s_add_u32 {t3}, {t0}, 0x700000
    s_add_u32 {t1}, {t1}, {KOFF}
    s_mov_b32 m0, {t1}
    v_xor_b32 {T[1]}, {n16}, {g4}
    v_lshlrev_b32 {T[1]}, 4, {T[1]}
    v_lshl_or_b32 {T[1]}, {g4}, 8, {T[1]}
    v_or_b32 {aK[0]}, {t3}, {T[1]}
    v_xor_b32 {aK[1]}, 64, {aK[0]}
    v_xor_b32 {aK[2]}, 0x80, {aK[0]}
    v_xor_b32 {aK[3]}, 0xc0, {aK[0]}
    s_waitcnt lgkmcnt(0)""")
    stamp("kernarg")
    P.vmem(f"global_load_dwordx4 {v(X,4)}, {aL16}, {pX}", "x")
    P.vmem(f"global_load_dword {vE}, {vZero}, {pWS}", "e")
    for u in range(4): P.vmem(f"global_load_dwordx4 {v(WQ+4*u,4)}, {aWQ[u]}, {pWQ} {NT}", "wq")
    for u in range(2): P.vmem(f"global_load_dwordx4 {v(W1+4*u,4)}, {aW1}, {pW1} offset:{u*3584} {NT}", "w1")
    def kload(i):
        if i == 4:
            P(f"s_lshl_b32 {t1}, {sW}, 13\ns_add_u32 m0, {t1}, {KOFF+4096}")
        P.vmem(f"global_load_lds_dwordx4 {aK[i]}, {pK} offset:{(i&3)*1024} {NT}", "k")
    def vload(i):
        if i in (0,4):
            P(f"s_lshl_b32 {t1}, {sW}, 13\ns_add_u32 m0, {t1}, {VOFF+i*1024}")
        P.vmem(f"global_load_lds_dwordx4 {aV[(i&1)+2*(i>>2)]}, {pV} offset:{(i&3)*1024} {NT}", "v")
    for i in range(min(K1,4)): kload(i)
    for i in range(4): P(f"v_xor_b32 {aK[4+i]}, 0x1000, {aK[i]}")
    for i in range(4,K1): kload(i)
    stamp("issued1")
    P(f"""
    s_lshl_b32 {sBP}, {sG}, 5
    s_add_u32 {sBP}, {sBP}, {sJ}
    s_mov_b32 {sMHI}, 0xfffff000
    s_mov_b32 {sH16}, 0xffff0000
    s_mov_b32 {sSL}, 0x01000100
    s_mov_b32 {sSH}, 0x03020302
    s_mov_b32 {sC}, {hx(f2u(128**-0.5*math.log2(math.e)))}
    s_mov_b32 {sCnt}, 0
    v_lshlrev_b32 {T[1]}, 1, {g4}
    v_xor_b32 {T[1]}, {n16}, {T[1]}
    v_lshlrev_b32 {T[1]}, 4, {T[1]}
    v_lshl_or_b32 {T[1]}, {g4}, 8, {T[1]}
    v_or_b32 {aV[0]}, {t3}, {T[1]}
    v_xor_b32 {aV[1]}, 0x80, {aV[0]}
    v_xor_b32 {aV[2]}, 0x1000, {aV[0]}
    v_xor_b32 {aV[3]}, 0x1080, {aV[0]}
    s_lshr_b32 {t0}, {sJ}, 2
    s_lshl_b32 {t0}, {t0}, 2
    s_add_u32 {t0}, {t0}, {sW}
    s_lshl_b32 {t0}, {t0}, 3
    s_lshl_b32 {t1}, {sG}, 8
    s_add_u32 {t0}, {t0}, {t1}            ; 256g + 32*(j>>2) + 8w
    v_and_b32 {T[0]}, 1, {L}
    v_lshl_add_u32 {T[1]}, {T[0]}, 2, {g4}
    v_add_lshl_u32 {T[1]}, {T[1]}, {t0}, 1
    v_mul_u32_u24 {aB1}, {sML}, {T[1]}
    v_add_u32 {T[1]}, {t0}, {g4}
    v_lshlrev_b32 {T[1]}, 10, {T[1]}
    v_lshl_add_u32 {T[1]}, {n16}, 4, {T[1]}
    s_and_b32 {t2}, {sJ}, 3
    s_lshl_b32 {t2}, {t2}, 8              ; cq*256
    v_add_u32 {T[1]}, {t2}, {T[1]}
    v_mul_u32_u24 {T[1]}, {sML}, {T[1]}
    v_add_u32 {aW2}, 0x1000, {T[1]}
    s_lshr_b32 {t0}, {sBP}, 2
    s_lshl_b32 {t0}, {t0}, 2
    s_add_u32 {t0}, {t0}, {sW}
    s_lshl_b32 {t0}, {t0}, 14
    s_add_u32 {t0}, {t0}, {t2}
    s_add_u32 {t0}, {t0}, 0x1000
    v_lshlrev_b32 {T[1]}, 10, {g4}
    v_lshl_add_u32 {T[1]}, {n16}, 4, {T[1]}
    v_add_u32 {aWO[0]}, {t0}, {T[1]}
    v_add_u32 {aWO[1]}, 0x2000, {aWO[0]}
    s_and_b32 {t0}, {sJ}, 15
    s_lshl_b32 {t1}, {sG}, 4
    s_add_u32 {t0}, {t0}, {t1}
    s_lshl_b32 {t0}, {t0}, 2              ; 4f
    v_add_lshl_u32 {aCol}, {g4}, {t0}, 1
    v_mov_b32 {vB1}, 0
    v_mov_b32 {vB2}, 0
    v_mov_b32 {vXc}, 0""")
    P.vmem(f"global_load_short_d16_hi {vB1}, {aB1}, {pB1}", "small")
    P.vmem(f"global_load_short_d16_hi {vB2}, {aCol}, {pB2}", "small")
    P.vmem(f"global_load_short_d16_hi {vXc}, {aCol}, {pX}", "small")
    P(f"""
    v_lshlrev_b32 {T[1]}, 4, {T[0]}
    v_mov_b32 {T[2]}, 0xffff
    v_lshlrev_b32 {T[1]}, {T[1]}, {T[2]}
    v_bfe_u32 {T[2]}, {L}, 1, 2
    v_cmp_eq_u32 s[50:51], 0, {T[2]}
    v_cmp_eq_u32 s[52:53], 1, {T[2]}
    v_cmp_eq_u32 s[54:55], 2, {T[2]}
    v_cmp_eq_u32 s[56:57], 3, {T[2]}
    v_cndmask_b32 {M[0]}, 0, {T[1]}, s[50:51]
    v_cndmask_b32 {M[1]}, 0, {T[1]}, s[52:53]
    v_cndmask_b32 {M[2]}, 0, {T[1]}, s[54:55]
    v_cndmask_b32 {M[3]}, 0, {T[1]}, s[56:57]
    s_and_b32 {t0}, {sJ}, 3
    s_lshl_b32 {t0}, {t0}, 2
    s_add_u32 {t0}, {t0}, {sW}
    s_lshl_b32 {t0}, {t0}, 6
    v_lshl_add_u32 {aXr}, {l3}, 3, {t0}
    s_and_b32 {t0}, {sJ}, 7
    s_lshl_b32 {t0}, {t0}, 2
    s_add_u32 {t0}, {t0}, {sW}
    s_lshl_b32 {t0}, {t0}, 5
    s_add_u32 {t0}, {t0}, {YOFF}
    v_lshl_add_u32 {aYr}, {l3}, 2, {t0}
    v_lshrrev_b32 {T[3]}, 5, {L}          ; l>>5
    v_and_b32 {T[4]}, 1, {g4}             ; (l>>4)&1
    s_lshl_b32 {t0}, {sW}, 9
    s_add_u32 {t0}, {t0}, {RED}
    v_lshlrev_b32 {T[1]}, 8, {T[3]}
    v_lshl_add_u32 {T[1]}, {c8}, 5, {T[1]}
    v_lshl_add_u32 {T[1]}, {T[4]}, 4, {T[1]}
    v_add_u32 {aRedW}, {t0}, {T[1]}
    v_lshlrev_b32 {T[1]}, 5, {n16}
    v_lshl_add_u32 {T[1]}, {g4}, 4, {T[1]}
    v_add_u32 {aR2w}, {t0}, {T[1]}
    v_lshlrev_b32 {T[1]}, 3, {L}
    v_add_u32 {aR2r}, {RED}, {T[1]}
    s_lshl_b32 {t0}, {sBP}, 10
    s_add_u32 {t0}, {t0}, {PB}
    v_add_u32 {aPst}, {t0}, {T[1]}
    s_lshl_b32 {t0}, {sW}, 11
    s_add_u32 {t0}, {t0}, {RED}
    v_lshl_add_u32 {aRedR}, {L}, 2, {t0}
    s_lshl_b32 {t0}, {sW}, 16
    s_lshl_b32 {t1}, {sBP}, 8
    s_add_u32 {t0}, {t0}, {t1}
    s_add_u32 {t0}, {t0}, {QB}
    v_lshl_add_u32 {aQst}, {L}, 2, {t0}
    s_lshl_b32 {t0}, {sG}, 2
    s_add_u32 {t0}, {t0}, {sW}
    s_lshl_b32 {t0}, {t0}, 11
    s_add_u32 {t0}, {t0}, {QB}
    v_lshlrev_b32 {T[1]}, 10, {T[4]}
    v_lshl_add_u32 {T[1]}, {T[3]}, 9, {T[1]}
    v_lshl_add_u32 {T[1]}, {n16}, 4, {T[1]}
    v_add_u32 {aQg}, {t0}, {T[1]}
    s_mul_i32 {t0}, {sW}, 272
    s_add_u32 {t0}, {t0}, {QOFF}
    v_and_b32 {T[1]}, 31, {L}
    v_lshlrev_b32 {T[1]}, 3, {T[1]}
    v_lshl_add_u32 {T[1]}, {T[3]}, 2, {T[1]}
    v_add_u32 {aQw}, {t0}, {T[1]}
    v_and_b32 {T[5]}, 3, {L}              ; l&3
    v_mul_u32_u24 {T[1]}, 272, {T[5]}
    v_lshl_add_u32 {T[1]}, {g4}, 4, {T[1]}
    v_add_u32 {aQr}, {QOFF}, {T[1]}
    ; K fragments
    s_lshl_b32 {t0}, {sW}, 13
    s_add_u32 {t0}, {t0}, {KOFF}
    v_xor_b32 {T[1]}, {n16}, {g4}
    v_lshlrev_b32 {T[1]}, 4, {T[1]}
    v_lshl_add_u32 {T[1]}, {n16}, 8, {T[1]}
    v_add_u32 {aKr[0]}, {t0}, {T[1]}
    v_xor_b32 {aKr[1]}, 64, {aKr[0]}
    v_xor_b32 {aKr[2]}, 0x80, {aKr[0]}
    v_xor_b32 {aKr[3]}, 0xc0, {aKr[0]}
    s_lshl_b32 {t0}, {sW}, 7
    s_add_u32 {t1}, {t0}, {SOFF}
    v_mul_u32_u24 {T[1]}, 528, {n16}
    v_lshl_add_u32 {T[1]}, {g4}, 4, {T[1]}
    v_add_u32 {aSw}, {t1}, {T[1]}
    v_mul_u32_u24 {T[1]}, 528, {T[5]}
    v_lshl_add_u32 {T[1]}, {g4}, 4, {T[1]}
    v_lshrrev_b32 {T[2]}, 2, {n16}
    v_lshl_add_u32 {T[1]}, {T[2]}, 7, {T[1]}
    v_add_u32 {aSr}, {SOFF}, {T[1]}
    s_lshl_b32 {t1}, {sBP}, 11
    s_add_u32 {t1}, {t1}, {t0}
    s_add_u32 {t1}, {t1}, {OB}
    v_lshlrev_b32 {T[1]}, 9, {n16}
    v_lshl_add_u32 {T[1]}, {g4}, 4, {T[1]}
    v_add_u32 {aOst}, {t1}, {T[1]}
    s_lshl_b32 {t1}, {sBP}, 7
    s_add_u32 {t1}, {t1}, {MLB}
    v_lshl_add_u32 {aMLst}, {n16}, 4, {t1}
    v_lshrrev_b32 {T[6]}, 2, {L}          ; l>>2
    v_and_b32 {T[1]}, 7, {T[6]}
    s_lshl_b32 {t1}, {sW}, 1
    v_xor_b32 {T[1]}, {t1}, {T[1]}
    v_lshlrev_b32 {T[1]}, 5, {T[1]}
    v_lshl_add_u32 {T[1]}, {T[6]}, 8, {T[1]}
    v_lshl_add_u32 {T[1]}, {T[5]}, 3, {T[1]}
    v_add_u32 {aVr[0]}, {VOFF}, {T[1]}
    v_xor_b32 {aVr[1]}, 32, {aVr[0]}
    ; o / (m,l) gather
    s_lshl_b32 {t0}, {sG}, 16
    s_lshr_b32 {t1}, {sJ}, 2
    s_lshl_b32 {t1}, {t1}, 2
    s_add_u32 {t1}, {t1}, {sW}
    s_lshl_b32 {t1}, {t1}, 6
    s_add_u32 {t0}, {t0}, {t1}
    s_add_u32 {t0}, {t0}, {OB}
    v_lshlrev_b32 {T[1]}, 11, {T[6]}
    v_lshl_add_u32 {T[1]}, {T[5]}, 4, {T[1]}
    v_add_u32 {aOg[0]}, {t0}, {T[1]}
    v_add_u32 {aOg[1]}, 0x8000, {aOg[0]}
    s_lshl_b32 {t0}, {sG}, 12
    s_lshr_b32 {t1}, {sJ}, 3
    s_lshl_b32 {t1}, {t1}, 4
    s_add_u32 {t0}, {t0}, {t1}
    s_add_u32 {t0}, {t0}, {MLB}
    v_lshl_add_u32 {aMLg}, {T[6]}, 7, {t0}
    ; h gather
    s_lshl_b32 {t0}, {sG}, 2
    s_lshr_b32 {t1}, {sJ}, 3
    s_add_u32 {t0}, {t0}, {t1}
    s_lshl_b32 {t0}, {t0}, 11
    s_bfe_u32 {t1}, {sJ}, 0x10002
    s_lshl_b32 {t1}, {t1}, 2
    s_add_u32 {t1}, {t1}, {sW}
    s_lshl_b32 {t1}, {t1}, 5
    s_add_u32 {t0}, {t0}, {t1}
    s_add_u32 {t0}, {t0}, {HB}
    v_lshlrev_b32 {T[1]}, 8, {l3}
    v_lshl_add_u32 {T[1]}, {T[0]}, 4, {T[1]}
    v_add_u32 {aHg}, {t0}, {T[1]}
    s_lshr_b32 {t0}, {sG}, 1
    s_lshl_b32 {t0}, {t0}, 10
    s_and_b32 {t1}, {sG}, 1
    s_lshl_b32 {t1}, {t1}, 4
    s_and_b32 {t2}, {sJ}, 15
    s_add_u32 {t1}, {t1}, {t2}
    s_lshl_b32 {t1}, {t1}, 4
    s_add_u32 {t0}, {t0}, {t1}
    s_add_u32 {t0}, {t0}, {PB}
    v_lshlrev_b32 {T[1]}, 15, {l3}
    v_lshl_add_u32 {T[1]}, {c8}, 12, {T[1]}
    v_add_u32 {aFg}, {t0}, {T[1]}""")
    stamp("addr")
    def reduce64(r):
        for k in (8,4,2,1): P(f"v_add_f32_dpp {r}, {r}, {r} row_ror:{k} {DPP}")
        P(f"v_add_f32_dpp {r}, {r}, {r} row_bcast:15 row_mask:0xa bank_mask:0xf")
        P(f"v_add_f32_dpp {r}, {r}, {r} row_bcast:31 row_mask:0xc bank_mask:0xf")
        P(f"v_readlane_b32 {sR}, {r}, 63")
    def rbf(d, s):
        P(f"v_cvt_pk_bf16_f32 {d}, {s}, {s}\nv_and_b32 {d}, {sH16}, {d}")
    def unpack(dst, src):
        for i in range(4):
            P(f"v_lshlrev_b32 {v(dst+2*i)}, 16, {v(src+i)}\nv_and_b32 {v(dst+2*i+1)}, {sH16}, {v(src+i)}")
    BC = "op_sel_hi:[1,0]"
    def layernorm(src, dst):
        unpack(F, src)
        P(f"""
        v_pk_add_f32 {v(D,2)}, {v(F,2)}, {v(F+2,2)}
        v_pk_add_f32 {v(D+2,2)}, {v(F+4,2)}, {v(F+6,2)}
        v_pk_add_f32 {v(D,2)}, {v(D,2)}, {v(D+2,2)}
        v_add_f32 {T[0]}, {v(D)}, {v(D+1)}""")
        reduce64(T[0])
        P(f"v_mov_b32 {T[2]}, {hx(f2u(1/512))}\nv_mul_f32 {T[2]}, {sR}, {T[2]}")
        for i in range(4): P(f"v_pk_add_f32 {v(D+2*i,2)}, {v(F+2*i,2)}, v[4:5] {BC} neg_lo:[0,1] neg_hi:[0,1]")
        P(f"v_pk_mul_f32 v[2:3], {v(D,2)}, {v(D,2)}")
        for i in range(1,4): P(f"v_pk_fma_f32 v[2:3], {v(D+2*i,2)}, {v(D+2*i,2)}, v[2:3]")
        P(f"v_add_f32 {T[0]}, {T[0]}, {T[1]}")
        rbf(T[2], T[2])
        reduce64(T[0])
        for i in range(4): P(f"v_pk_add_f32 {v(D+2*i,2)}, {v(F+2*i,2)}, v[4:5] {BC} neg_lo:[0,1] neg_hi:[0,1]")
        P(f"v_mov_b32 {T[2]}, {hx(f2u(1/512))}\nv_mul_f32 {T[2]}, {sR}, {T[2]}")
        rbf(T[2], T[2])
        P(f"v_add_f32 {T[2]}, {hx(f2u(1e-5))}, {T[2]}")
        rbf(T[2], T[2])
        P(f"v_sqrt_f32 {T[2]}, {T[2]}")
        for i in range(4): P(f"v_cvt_pk_bf16_f32 {v(dst+i)}, {v(D+2*i)}, {v(D+2*i+1)}")
        rbf(T[2], T[2])
        P(f"v_rcp_f32 {T[2]}, {T[2]}")
        unpack(D, dst)
        for i in range(4): P(f"v_pk_mul_f32 {v(D+2*i,2)}, {v(D+2*i,2)}, v[4:5] {BC}")
        for i in range(4): P(f"v_cvt_pk_bf16_f32 {v(dst+i)}, {v(D+2*i)}, {v(D+2*i+1)}")
    P.wait_vm("e")
    stamp("x")
    P(f"""
    v_readfirstlane_b32 {t0}, {vE}
    s_mul_i32 {t0}, {t0}, 1664525
    s_add_u32 {sT32}, {t0}, 1013904223
    s_and_b32 {sT12}, {sT32}, 0xfff
    v_mov_b32 {vTag}, {sT12}""")
    layernorm(X, XN)
    P(f"ds_write_b128 {aL16}, {v(XN,4)} offset:{XOFF}\ns_waitcnt lgkmcnt(0)\nds_read_b64 v[8:9], {aXr}")
    layernorm(XN, X)
    P(f"ds_write_b128 {aL16}, {v(X,4)} offset:{YOFF}\ns_waitcnt lgkmcnt(0)\nds_read_b32 {vE}, {aYr}")
    for u in range(4):
        src = "v8" if u < 2 else "v9"
        P(f"v_perm_b32 {T[0]}, {src}, {src}, {sSL if u%2==0 else sSH}")
        for d in range(4): P(f"v_and_b32 {v(AOP+4*u+d)}, {T[0]}, {M[d]}")
    stamp("ln")
    P.wait_vm("wq")
    stamp("wq")
    for u in range(4):
        P(f"v_mfma_f32_16x16x32_bf16 {v(ACC,4)}, {v(AOP+4*u,4)}, {v(WQ+4*u,4)}, {'0' if u==0 else v(ACC,4)}")
    P("s_waitcnt lgkmcnt(0)")
    for u in range(2):
        P(f"v_perm_b32 {T[0]}, {vE}, {vE}, {sSL if u%2==0 else sSH}")
        for d in range(4): P(f"v_and_b32 {v(F+4*u+d)}, {T[0]}, {M[d]}")
    P.wait_vm("w1")
    for u in range(2):
        P(f"v_mfma_f32_16x16x32_bf16 {v(ACC+4,4)}, {v(F+4*u,4)}, {v(W1+4*u,4)}, {'0' if u==0 else v(ACC+4,4)}")
    for i in range(K1,8): kload(i)
    P(f"""
    s_mov_b32 exec_lo, 0x00ff00ff
    s_mov_b32 exec_hi, 0xff00ff00
    ds_write_b128 {aRedW}, {v(ACC,4)}
    ds_write_b128 {aRedW}, {v(ACC+4,4)} offset:2048
    s_mov_b64 exec, -1
    s_waitcnt lgkmcnt(0)
    s_barrier
    s_cmp_gt_u32 {sW}, {sML}
    s_cbranch_scc1 L_qh_done""")
    for k in range(4): P(f"ds_read2st64_b32 {v(F+2*k,2)}, {aRedR} offset0:{2*k} offset1:{2*k+1}")
    P(f"""
    s_waitcnt lgkmcnt(0)
    v_pk_add_f32 {v(F,2)}, {v(F,2)}, {v(F+2,2)}
    v_pk_add_f32 {v(F+4,2)}, {v(F+4,2)}, {v(F+6,2)}
    v_pk_add_f32 {v(F,2)}, {v(F,2)}, {v(F+4,2)}
    v_add_f32 {T[0]}, {v(F)}, {v(F+1)}
    v_and_or_b32 {T[0]}, {T[0]}, {sMHI}, {vTag}""")
    P.vmem(f"global_store_dword {aQst}, {T[0]}, {pWS} {ST}", "qst", common=False)
    P("L_qh_done:")
    stamp("qpub")
    for i in range(V1): vload(i)
    P.wait_vm("k")
    stamp("k")
    def qpoll(common):
        for a in range(2): P.vmem(f"global_load_dwordx4 {v(G+4*a,4)}, {aQg}, {pWS} offset:{256*a} {LD}", "qg", common)
    def hpoll(common):
        P.vmem(f"global_load_dwordx4 {v(GH,4)}, {aHg}, {pWS} {LD}", "hg", common)
    qpoll(True); hpoll(True)
    for i in range(V1,8): vload(i)
    for t in range(2):
        for ks in range(4): P(f"ds_read_b128 {v(KA+16*t+4*ks,4)}, {aKr[ks]} offset:{4096*t}")
    def check(regs, extra=[]):
        for r in regs: P(f"v_xor_b32 {r}, {sT12}, {r}")
        acc = T[0]; rs = list(regs)
        P(f"v_or3_b32 {acc}, {rs[0]}, {rs[1]}, {rs[2]}"); rs = rs[3:]
        while len(rs) >= 2:
            P(f"v_or3_b32 {acc}, {acc}, {rs[0]}, {rs[1]}"); rs = rs[2:]
        if rs: P(f"v_or_b32 {acc}, {acc}, {rs[0]}")
        P(f"v_and_b32 {acc}, 0xfff, {acc}")
        for r in extra: P(f"v_xor_b32 {r}, {sT32}, {r}")
        ex = list(extra)
        while ex:
            P(f"v_or3_b32 {acc}, {acc}, {ex[0]}, {ex[1]}"); ex = ex[2:]
        P(f"v_cmp_ne_u32 vcc, 0, {acc}")
    tails = []
    def poll(name, tag, reissue, regs, extra=[]):
        P.wait_vm(tag)
        P(f"L_{name}_chk:")
        check(regs, extra)
        P(f"s_cbranch_vccnz L_{name}_retry")
        def tail():
            P(f"L_{name}_retry:\ns_add_u32 {sCnt}, {sCnt}, 1\ns_cmp_gt_u32 {sCnt}, 0x200000\ns_cbranch_scc1 L_end")
            reissue(False)
            P(f"s_waitcnt vmcnt(0)\ns_branch L_{name}_chk")
        tails.append(tail)
    poll("q", "qg", qpoll, [v(G+i) for i in range(8)])
    stamp("qgot")
    P(f"""
    v_pk_add_f32 {v(G,2)}, {v(G,2)}, {v(G+4,2)}
    v_pk_add_f32 {v(G+2,2)}, {v(G+2,2)}, {v(G+6,2)}
    v_permlane32_swap_b32 {v(G)}, {v(G+2)}
    v_permlane32_swap_b32 {v(G+1)}, {v(G+3)}
    v_pk_add_f32 {v(G,2)}, {v(G,2)}, {v(G+2,2)}
    v_cvt_pk_bf16_f32 {T[0]}, {v(G)}, {v(G+1)}
    ds_write_b32 {aQw}, {T[0]}
    s_waitcnt lgkmcnt(0)
    s_barrier""")
    for ks in range(4): P(f"ds_read_b128 {v(QF+4*ks,4)}, {aQr} offset:{64*ks}")
    for ks in range(4):
        P(f"s_waitcnt lgkmcnt({3-ks})")
        for t in range(2):
            P(f"v_mfma_f32_16x16x32_bf16 {v(ACC+4*t,4)}, {v(KA+16*t+4*ks,4)}, {v(QF+4*ks,4)}, {'0' if ks==0 else v(ACC+4*t,4)}")
    P(f"""
    s_mov_b32 exec_lo, 0x000f000f
    s_mov_b32 exec_hi, 0x000f000f
    ds_write_b128 {aSw}, {v(ACC,4)}
    ds_write_b128 {aSw}, {v(ACC+4,4)} offset:64
    s_mov_b64 exec, -1
    s_waitcnt lgkmcnt(0)
    s_barrier
    ds_read_b128 {v(S,4)}, {aSr}
    ds_read_b128 {v(S+4,4)}, {aSr} offset:64""")
    for t in range(2): P.vmem(f"global_load_dwordx4 {v(W2+4*t,4)}, {aW2}, {pW2} offset:{-4096+4096*t} {NT}", "w2")
    for t in range(4): P.vmem(f"global_load_dwordx4 {v(WO+4*t,4)}, {aWO[t>>1]}, {pWO} offset:{-4096+4096*(t&1)} {NT}", "wo")
    def allred(op, r, tmp, bits):
        for b in bits:
            if b == 2: P(f"{op}_dpp {r}, {r}, {r} row_ror:4 {DPP}")
            if b == 3: P(f"{op}_dpp {r}, {r}, {r} row_ror:8 {DPP}")
            if b == 4: P(f"v_mov_b32 {tmp}, {r}\nv_permlane16_swap_b32 {r}, {tmp}\n{op} {r}, {r}, {tmp}")
            if b == 5: P(f"v_mov_b32 {tmp}, {r}\nv_permlane32_swap_b32 {r}, {tmp}\n{op} {r}, {r}, {tmp}")
    P(f"""
    s_waitcnt lgkmcnt(0)
    v_max3_f32 {vMc}, {v(S)}, {v(S+1)}, {v(S+2)}
    v_max3_f32 {vMc}, {vMc}, {v(S+3)}, {v(S+4)}
    v_max3_f32 {vMc}, {vMc}, {v(S+5)}, {v(S+6)}
    v_max_f32 {vMc}, {vMc}, {v(S+7)}""")
    allred("v_max_f32", vMc, T[0], (2,3,4,5))
    P(f"v_mul_f32 {vMc}, {sC}, {vMc}")
    for i in range(8): P(f"v_fma_f32 {v(S+i)}, {v(S+i)}, {sC}, -{vMc}")
    for i in range(8): P(f"v_exp_f32 {v(S+i)}, {v(S+i)}")
    for i in range(4): P(f"v_cvt_pk_bf16_f32 {v(R+i)}, {v(S+2*i)}, {v(S+2*i+1)}")
    P(f"""
    v_pk_add_f32 {v(S,2)}, {v(S,2)}, {v(S+2,2)}
    v_pk_add_f32 {v(S+4,2)}, {v(S+4,2)}, {v(S+6,2)}""")
    for ks in range(1,4):
        for i in range(4): P(f"v_mov_b32_dpp {v(R+4*ks+i)}, {v(R+i)} row_ror:{16-4*ks} {DPP}")
    P(f"""
    v_pk_add_f32 {v(S,2)}, {v(S,2)}, {v(S+4,2)}
    v_add_f32 {vLs}, {v(S)}, {v(S+1)}""")
    allred("v_add_f32", vLs, T[0], (2,3,4,5))
    stamp("softmax")
    P.wait_vm("v")
    stamp("v")
    P("s_barrier")
    for ks in range(4):
        for t in range(2):
            for hf in range(2):
                P(f"ds_read_b64_tr_b16 {v(VA+8*ks+4*t+2*hf,2)}, {aVr[t]} offset:{8192*ks+4096*hf}")
    for ks in range(4):
        for t in range(2):
            P(f"s_waitcnt lgkmcnt({min(15,14-4*ks-2*t)})")
            P(f"v_mfma_f32_16x16x32_bf16 {v(ACC+4*t,4)}, {v(VA+8*ks+4*t,4)}, {v(R+4*ks,4)}, {'0' if ks==0 else v(ACC+4*t,4)}")
    P(f"""
    v_mov_b32 {v(F)}, {vMc}
    v_mov_b32 {v(F+1)}, {vLs}
    v_mov_b32 {v(F+2)}, {sT32}
    v_mov_b32 {v(F+3)}, {sT32}
    s_cmp_eq_u32 {sW}, 0
    s_mov_b32 exec_lo, 0x000f000f
    s_mov_b32 exec_hi, 0x000f000f""")
    for t in range(2):
        for r in range(4): P(f"v_and_or_b32 {v(ACC+4*t+r)}, {v(ACC+4*t+r)}, {sMHI}, {vTag}")
        P.vmem(f"global_store_dwordx4 {aOst}, {v(ACC+4*t,4)}, {pWS} offset:{64*t} {ST}", "ost")
    P(f"s_cbranch_scc0 L_ml_done\ns_mov_b64 exec, 15")
    P.vmem(f"global_store_dwordx4 {aMLst}, {v(F,4)}, {pWS} {ST}", "mlst", common=False)
    P("L_ml_done:\ns_mov_b64 exec, -1")
    stamp("opub")
    def opoll(common):
        for a in range(2): P.vmem(f"global_load_dwordx4 {v(G+4*a,4)}, {aOg[a]}, {pWS} {LD}", "og", common)
        for a in range(2): P.vmem(f"global_load_dwordx4 {v(G+8+4*a,4)}, {aMLg}, {pWS} offset:{2048*a} {LD}", "og", common)
    def tr4(b, tail_bits):
        P(f"""
        v_permlane32_swap_b32 {v(b)}, {v(b+2)}
        v_permlane32_swap_b32 {v(b+1)}, {v(b+3)}
        v_pk_add_f32 {v(b,2)}, {v(b,2)}, {v(b+2,2)}
        v_permlane16_swap_b32 {v(b)}, {v(b+1)}
        v_add_f32 {v(b)}, {v(b)}, {v(b+1)}""")
        for k in tail_bits: P(f"v_add_f32_dpp {v(b)}, {v(b)}, {v(b)} row_ror:{k} {DPP}")
    def gemv(nt, src, wreg, acc):
        for t in range(nt):
            for d in range(4): P(f"v_and_b32_dpp {v(AOP+4*t+d)}, {src}, {M[d]} quad_perm:[{t},{t},{t},{t}] {DPP}")
        for t in range(nt):
            P(f"v_mfma_f32_16x16x32_bf16 {v(acc,4)}, {v(AOP+4*t,4)}, {v(wreg+4*t,4)}, {'0' if t==0 else v(acc,4)}")
    def redpub(off_lds, off_ws):
        for k in range(4): P(f"ds_read_b64 {v(F+2*k,2)}, {aR2r} offset:{off_lds+512*k}")
        P(f"""
        s_waitcnt lgkmcnt(2)
        v_pk_add_f32 {v(F,2)}, {v(F,2)}, {v(F+2,2)}
        s_waitcnt lgkmcnt(0)
        v_pk_add_f32 {v(F+4,2)}, {v(F+4,2)}, {v(F+6,2)}
        v_pk_add_f32 {v(F,2)}, {v(F,2)}, {v(F+4,2)}
        v_and_or_b32 {v(F)}, {v(F)}, {sMHI}, {vTag}
        v_and_or_b32 {v(F+1)}, {v(F+1)}, {sMHI}, {vTag}""")
        P.vmem(f"global_store_dwordx2 {aPst}, {v(F,2)}, {pWS} offset:{off_ws} {ST}", "pst", common=False)
    P(f"s_cmp_eq_u32 {sML}, 0\ns_cbranch_scc1 L_mlp_done")
    poll("h", "hg", hpoll, [v(GH+i) for i in range(4)])
    tr4(GH, (8,))
    u = v(GH)
    rbf(u, u)
    P.wait_vm("small")
    P(f"v_add_f32 {u}, {u}, {vB1}")
    rbf(u, u)
    k1 = -2*math.sqrt(2/math.pi)*math.log2(math.e)
    P(f"""
    v_mul_f32 {T[0]}, {u}, {u}
    v_mov_b32 {T[1]}, {hx(f2u(k1))}
    v_fmac_f32 {T[1]}, {hx(f2u(k1*0.044715))}, {T[0]}
    v_mul_f32 {T[0]}, {u}, {T[1]}
    v_exp_f32 {T[0]}, {T[0]}
    v_add_f32 {T[0]}, 1.0, {T[0]}
    v_rcp_f32 {T[0]}, {T[0]}
    v_mul_f32 {T[0]}, {u}, {T[0]}
    v_cvt_pk_bf16_f32 {T[0]}, {T[0]}, {T[0]}""")
    P.wait_vm("w2")
    gemv(2, T[0], W2, ACC)
    P(f"""
    s_mov_b32 exec_hi, 0
    ds_write_b128 {aR2w}, {v(ACC,4)} offset:2048
    s_mov_b64 exec, -1
    s_waitcnt lgkmcnt(0)
    s_barrier
    s_cmp_lg_u32 {sW}, 2
    s_cbranch_scc1 L_mlp_done""")
    redpub(2048, 512)
    P("L_mlp_done:")
    stamp("mlp")
    opoll(True)
    poll("o", "og", opoll, [v(G+i) for i in range(8)], [v(G+10), v(G+11), v(G+14), v(G+15)])
    stamp("ogot")
    m0_, l0_, m1_, l1_ = v(G+8), v(G+9), v(G+12), v(G+13)
    P(f"v_max_f32 {T[1]}, {m0_}, {m1_}")
    allred("v_max_f32", T[1], T[0], (2,3,4,5))
    P(f"""
    v_sub_f32 {T[2]}, {m0_}, {T[1]}
    v_sub_f32 {T[4]}, {m1_}, {T[1]}
    v_exp_f32 {T[2]}, {T[2]}
    v_exp_f32 {T[4]}, {T[4]}
    v_mul_f32 {T[1]}, {T[2]}, {l0_}
    v_fmac_f32 {T[1]}, {T[4]}, {l1_}
    v_pk_mul_f32 {v(G,2)}, {v(G,2)}, v[4:5] {BC}
    v_pk_mul_f32 {v(G+2,2)}, {v(G+2,2)}, v[4:5] {BC}
    v_pk_fma_f32 {v(G,2)}, {v(G+4,2)}, v[6:7], {v(G,2)} op_sel_hi:[1,0,1]
    v_pk_fma_f32 {v(G+2,2)}, {v(G+6,2)}, v[6:7], {v(G+2,2)} op_sel_hi:[1,0,1]""")
    allred("v_add_f32", T[1], T[0], (2,3,4,5))
    P(f"v_rcp_f32 {T[1]}, {T[1]}")
    tr4(G, (4,8))
    P(f"v_mul_f32 {T[0]}, {v(G)}, {T[1]}\nv_cvt_pk_bf16_f32 {T[0]}, {T[0]}, {T[0]}")
    gemv(4, T[0], WO, ACC)
    P(f"""
    s_mov_b32 exec_hi, 0
    ds_write_b128 {aR2w}, {v(ACC,4)}
    s_mov_b64 exec, -1
    s_waitcnt lgkmcnt(0)
    s_barrier""")
    stamp("wo")
    P(f"s_cmp_lg_u32 {sW}, 0\ns_cbranch_scc1 L_not0")
    redpub(0, 0)
    P(f"""
    s_branch L_fin
    L_not0:
    s_cmp_lg_u32 {sW}, 1
    s_cbranch_scc1 L_fin
    s_cmp_ge_u32 {sJ}, 16
    s_cbranch_scc1 L_fin""")
    def fm(common):
        P(f"s_mov_b32 exec_hi, 0x00ffffff")
        P.vmem(f"global_load_dwordx4 {v(FG+4,4)}, {aFg}, {pWS} offset:512 {LD}", "fm", common)
        P(f"s_mov_b32 exec_hi, -1")
    def fs(common):
        P.vmem(f"global_load_dwordx4 {v(FG,4)}, {aFg}, {pWS} {LD}", "fs", common)
    def fm_retry(common):
        for i in range(4): P(f"v_mov_b32 {v(FG+4+i)}, {vTag}")
        fm(common)
    fm_retry(True); fs(True)
    poll("fm", "fm", fm_retry, [v(FG+4+i) for i in range(4)])
    tr4(FG+4, (8,4,2,1))
    u = v(FG+4)
    rbf(u, u)
    P(f"v_add_f32 {u}, {u}, {vB2}")
    rbf(u, u)
    P(f"""
    v_mul_f32 {T[0]}, {hx(f2u(-math.log2(math.e)))}, {u}
    v_exp_f32 {T[0]}, {T[0]}
    v_add_f32 {T[0]}, 1.0, {T[0]}
    v_rcp_f32 {T[0]}, {T[0]}
    v_mul_f32 {vGate}, {u}, {T[0]}""")
    rbf(vGate, vGate)
    stamp("gate")
    poll("fs", "fs", fs, [v(FG+i) for i in range(4)])
    stamp("sgot")
    tr4(FG, (8,4,2,1))
    u = v(FG)
    rbf(u, u)
    P(f"v_mul_f32 {u}, {u}, {vGate}")
    rbf(u, u)
    P(f"""
    v_add_f32 {u}, {u}, {vXc}
    v_cvt_pk_bf16_f32 {u}, {u}, {u}
    s_mov_b32 exec_lo, 0x00010001
    s_mov_b32 exec_hi, 0x00010001
    global_store_short {aCol}, {u}, {pOUT}
    s_cmp_lg_u32 s2, 0
    s_cbranch_scc1 L_fin
    s_mov_b64 exec, 1
    v_mov_b32 {T[0]}, {sT32}
    global_store_dword {vZero}, {T[0]}, {pWS}
    L_fin:""")
    if cfg.get("spin"):
        P(f"""
        L_spin:
        s_memrealtime s[58:59]
        s_waitcnt lgkmcnt(0)
        s_sub_u32 {t0}, s58, s60
        s_cmp_lt_u32 {t0}, {cfg["spin"]}
        s_cbranch_scc1 L_spin""")
    if diag:
        P("s_mov_b64 exec, -1\ns_waitcnt vmcnt(0)")
        stamp("end")
        P(f"""
        s_memrealtime s[58:59]
        s_getreg_b32 {t2}, hwreg(HW_REG_XCC_ID)
        s_lshl_b32 {t0}, s2, 2
        s_add_u32 {t0}, {t0}, {sW}
        s_lshl_b32 {t0}, {t0}, 7
        s_add_u32 {t0}, {t0}, {STAMP}
        v_mov_b32 {T[0]}, {t0}
        s_waitcnt lgkmcnt(0)""")
        for i, r in enumerate(["s60", "s58", t2, sCnt] + [f"s{62+2*i}" for i in range(nstamp[0])]):
            P(f"v_mov_b32 {T[1]}, {r}\nglobal_store_dword {T[0]}, {T[1]}, {pWS} offset:{4*i}")
    P("s_endpgm")
    for t in tails: t()
    P("L_end:\ns_endpgm")
    added = P.pad(cfg.get("report", False))
    head = open(cfg.get("ref", "recurrent_scan__sliding_block_cached__mixer_channel_mlp__decode.s.ref")).read().split("\n")
    head = [h for h in head if h.startswith(";") and "@launch" not in h and "Override launch" not in h and "grid=ceil" not in h]
    txt = "\n".join(head) + f"""
; @launch grid=(256,1,1) block=(256,1,1) lds={LDS_END}
.amdgcn_target "amdgcn-amd-amdhsa--gfx950"
.text
.globl {KN}
.p2align 8
.type {KN},@function
{KN}:
""" + P.text() + f""".section .rodata,"a"
.p2align 6
.amdhsa_kernel {KN}
  .amdhsa_next_free_vgpr {NV}
  .amdhsa_next_free_sgpr 102
  .amdhsa_accum_offset {NV}
  .amdhsa_group_segment_fixed_size 0
  .amdhsa_kernarg_size 104
  .amdhsa_user_sgpr_count 2
  .amdhsa_user_sgpr_kernarg_segment_ptr 1
  .amdhsa_system_sgpr_workgroup_id_x 1
.end_amdhsa_kernel
"""
    return txt, names, added

if __name__ == "__main__":
    import json
    out = sys.argv[1]
    cfg = json.loads(sys.argv[2]) if len(sys.argv) > 2 else {}
    txt, names, added = gen(cfg)
    open(out, "w").write(txt)
    if cfg.get("diag"): open(out + ".names", "w").write(" ".join(names))
    print(out, "nops added:", added)
```
